```python
import torch

def _softmax(x, axis=-1):
    return torch.softmax(x, dim=axis)
def _gelu(x):
    return torch.nn.functional.gelu(x, approximate="tanh")
def _silu(x):
    return torch.nn.functional.silu(x)
def _sigmoid(x):
    return torch.sigmoid(x)
def _layernorm(x, axis=-1, eps=1e-5):
    m = x.mean(dim=axis, keepdim=True)
    v = x.var(dim=axis, keepdim=True, unbiased=False)
    return (x - m) / torch.sqrt(v + eps)
def _scatter_add(tgt, idx, src, axis=0):
    return tgt.clone().index_add_(axis, idx, src)
def _segment_sum(src, seg, n):
    out = torch.zeros((n,) + src.shape[1:], dtype=src.dtype)
    return out.index_add_(0, seg, src)
def _pad(x, pw):
    flat = tuple(v for pair in reversed(pw) for v in pair)
    return torch.nn.functional.pad(x, flat)

kernel_name = 'gated_mix__mha_block__grouped_kv_mqa__prompt'

def setup_inputs():

    _w = (lambda a: (lambda t: t.to(torch.bfloat16) if t.is_floating_point() else t)(torch.as_tensor(a)))
    def _A_setup():
        B, S, D, H = 1, 2048, 512, 32
        return {
            "x": _w((lambda *s: torch.randn(*s, dtype=torch.bfloat16) * 0.05)(B, S, D)),
            "wqkv": _w((lambda *s: torch.randn(*s, dtype=torch.bfloat16) * 3.2)(D, 3 * D)),
            "wo": _w((lambda *s: torch.randn(*s, dtype=torch.bfloat16) * 1.6)(D, D)),
        }
    _A_in = _A_setup()

    def _B_setup():
        B, S, D, H = 1, 2048, 512, 32
        Dh = D // H
        return {
            "x": _w((lambda *s: torch.randn(*s, dtype=torch.bfloat16) * 0.05)(B, S, D)),
            "wq": _w((lambda *s: torch.randn(*s, dtype=torch.bfloat16) * 3.2)(D, H * Dh)),
            "wk": _w((lambda *s: torch.randn(*s, dtype=torch.bfloat16) * 3.2)(D, Dh)),
            "wv": _w((lambda *s: torch.randn(*s, dtype=torch.bfloat16) * 1.6)(D, Dh)),
            "wo": _w((lambda *s: torch.randn(*s, dtype=torch.bfloat16) * 1.6)(H * Dh, D)),
        }
    _B_in = _B_setup()

    return {
        "A_x": _A_in["x"],
        "A_wqkv": _A_in["wqkv"],
        "A_wo": _A_in["wo"],
        "B_x": _B_in["x"],
        "B_wq": _B_in["wq"],
        "B_wk": _B_in["wk"],
        "B_wv": _B_in["wv"],
        "B_wo": _B_in["wo"],
        "gate_w": _w((lambda *s: torch.randn(*s, dtype=torch.bfloat16) * 0.05)(512) * 16.0),
    }

def reference(A_x, A_wqkv, A_wo, B_x, B_wq, B_wk, B_wv, B_wo, gate_w):
    def _A_ref(x, wqkv, wo):
        B, S, D = x.shape
        H = 32
        Dh = D // H
        qkv = (lambda x, *d: x.permute(*d))((x @ wqkv).reshape(B, S, 3, H, Dh), 2, 0, 3, 1, 4)
        q, k, v = qkv[0], qkv[1], qkv[2]
        scores = torch.einsum("bhqd,bhkd->bhqk", q, k) * (Dh ** -0.5)
        p = _softmax(scores, axis=-1)
        o = torch.einsum("bhqk,bhkd->bhqd", p, v)
        return (lambda x, *d: x.permute(*d))(o, 0, 2, 1, 3).reshape(B, S, D) @ wo

    def _B_ref(x, wq, wk, wv, wo):
        B, S, D = x.shape
        H = 32
        Dh = D // H
        q = (lambda x, *d: x.permute(*d))((x @ wq).reshape(B, S, H, Dh), 0, 2, 1, 3)
        k = x @ wk
        v = x @ wv
        scores = torch.einsum("bhqd,bkd->bhqk", q, k) * (Dh ** -0.5)
        p = _softmax(scores, axis=-1)
        o = torch.einsum("bhqk,bkd->bhqd", p, v)
        return (lambda x, *d: x.permute(*d))(o, 0, 2, 1, 3).reshape(B, S, H * Dh) @ wo

    x = A_x
    g = _sigmoid((x * gate_w).sum(-1, keepdims=True))
    a = _A_ref(x, A_wqkv, A_wo)
    b = _B_ref(x, B_wq, B_wk, B_wv, B_wo)
    return g * a + (1 - g) * b
```

```python
class Asm:
    def __init__(self):
        self.lines = []
        self.nlab = 0
    def __call__(self, s):
        for l in s.split('\n'):
            l = l.strip()
            if not l: continue
            if l.endswith(':') or l.startswith('.'):
                self.lines.append(l)
            else:
                self.lines.append('    ' + l)
    def c(self, s):
        self.lines.append('    ; ' + s)
    def label(self, base):
        self.nlab += 1
        return f'{base}_{self.nlab}'
    def nop(self, n):
        while n > 0:
            k = min(n, 16)
            self(f's_nop {k-1}')
            n -= k
    def text(self):
        return '\n'.join(self.lines) + '\n'

def vr(a, n=1):
    return f'v{a}' if n == 1 else f'v[{a}:{a+n-1}]'
def ar(a, n=1):
    return f'a{a}' if n == 1 else f'a[{a}:{a+n-1}]'
def sr(a, n=1):
    return f's{a}' if n == 1 else f's[{a}:{a+n-1}]'

def kd(name, nv, na, ns=96, denorm=3):
    acc = (nv + 3) // 4 * 4
    return f'''.section .rodata,"a"
.p2align 6
.amdhsa_kernel {name}
  .amdhsa_next_free_vgpr {acc + na}
  .amdhsa_next_free_sgpr {ns}
  .amdhsa_accum_offset {acc}
  .amdhsa_group_segment_fixed_size 0
  .amdhsa_kernarg_size 96
  .amdhsa_user_sgpr_count 2
  .amdhsa_user_sgpr_kernarg_segment_ptr 1
  .amdhsa_system_sgpr_workgroup_id_x 1
  .amdhsa_float_denorm_mode_32 {denorm}
.end_amdhsa_kernel
.text
'''
def head(name):
    return f'''.globl {name}
.p2align 8
.type {name},@function
{name}:
'''
```

```python
from asmlib import *
import struct

WS_Q  = 0
WS_KV = 4 << 20
WS_G  = 0x880000
WS_O  = 9 << 20
WS_SIZE = 16 << 20
CSCALE = 0.25 * 1.4426950408889634
def f2u(x): return struct.unpack('<I', struct.pack('<f', x))[0]

def srd(a, d, base, n):
    a(f's_mov_b32 s{d}, s{base}')
    a(f's_mov_b32 s{d+1}, s{base+1}')
    a(f's_mov_b32 s{d+2}, {n}')
    a(f's_mov_b32 s{d+3}, 0x00020000')

def swap23(a, dst, src, t):
    a(f'v_and_b32 {dst}, 0x13, {src}')
    a(f'v_and_b32 {t}, 4, {src}')
    a(f'v_lshl_or_b32 {dst}, {t}, 1, {dst}')
    a(f'v_and_b32 {t}, 8, {src}')
    a(f'v_lshrrev_b32 {t}, 1, {t}')
    a(f'v_or_b32 {dst}, {dst}, {t}')

def gen_k1():
    a = Asm()
    name = 'proj_kernel'
    a.lines.append(head(name))
    SX, SW, SE, SWS = 16, 20, 24, 28
    sTB, sFB, sWV, sWST, sXO, sWO, sWSTEP, sM0X, sM0W = 32, 33, 34, 35, 36, 37, 38, 39, 40
    sFLIP, sT0, sT1, sHS, sTS, sBASE, sSC, sTMP, sTMP2, sTE = 41, 42, 43, 44, 45, 46, 47, 48, 49, 50
    vXA, vWA, vL16 = 1, 5, 9
    vXR = 10
    vWR = 26
    vER = 30
    vLANE, vT0, vT1, vT2 = 31, 32, 33, 34
    vST = 35
    vXF = 36
    vWF = 52
    vEF = 68
    vACC = 76
    vACE = 140
    NV = 156
    EOFF = 131072
    a(f'''
    s_cmp_ge_u32 s2, 256
    s_cbranch_scc1 L1_done
    s_load_dwordx4 s[4:7], s[0:1], 0
    s_load_dwordx2 s[8:9], s[0:1], 32
    s_load_dwordx4 s[52:55], s[0:1], 40
    s_load_dwordx2 s[56:57], s[0:1], 64
    s_load_dwordx2 s[12:13], s[0:1], 88
    v_lshrrev_b32 v{vT0}, 6, v0
    v_and_b32 v{vLANE}, 63, v0
    v_readfirstlane_b32 s{sWV}, v{vT0}
    s_and_b32 s{sTMP}, s2, 7
    s_lshr_b32 s{sTMP2}, s2, 3
    s_lshr_b32 s{sTB}, s{sTMP}, 1
    s_lshl_b32 s{sTB}, s{sTB}, 2
    s_and_b32 s{sFB}, s{sTMP2}, 3
    s_add_u32 s{sTB}, s{sTB}, s{sFB}
    s_and_b32 s{sFB}, s{sTMP}, 1
    s_lshl_b32 s{sFB}, s{sFB}, 3
    s_lshr_b32 s{sTMP2}, s{sTMP2}, 2
    s_add_u32 s{sFB}, s{sFB}, s{sTMP2}
    s_cmp_lt_u32 s{sFB}, 12
    s_cselect_b32 s{sWST}, 3, 1
    s_lshl_b32 s{sWST}, s{sWST}, 10
    s_lshl_b32 s{sWSTEP}, s{sWST}, 6
    s_and_b32 s{sFLIP}, s{sFB}, 1
    v_lshlrev_b32 v{vL16}, 4, v{vLANE}
    ''')
    a(f'''
    v_lshrrev_b32 v{vT0}, 4, v{vLANE}
    v_and_b32 v{vT1}, 7, v{vLANE}
    v_xor_b32 v{vT1}, v{vT1}, v{vT0}
    v_lshlrev_b32 v{vT1}, 4, v{vT1}
    v_lshrrev_b32 v{vT2}, 3, v{vLANE}
    v_lshl_add_u32 v{vXA}, v{vT2}, 10, v{vT1}
    v_xor_b32 v{vXA+1}, 64, v{vXA}
    v_add_u32 v{vXA+1}, 7168, v{vXA+1}
    v_add_u32 v{vXA+2}, {2*7168}, v{vXA}
    v_add_u32 v{vXA+3}, {2*7168}, v{vXA+1}
    ''')
    a(f'''
    v_bfe_u32 v{vT1}, v{vLANE}, 2, 2
    v_xor_b32 v{vT1}, v{vT1}, v{vT0}
    v_lshlrev_b32 v{vT1}, 6, v{vT1}
    v_and_b32 v{vT2}, 3, v{vLANE}
    v_lshl_add_u32 v{vT1}, v{vT2}, 4, v{vT1}
    v_mad_u32_u24 v{vWA}, v{vT0}, s{sWST}, v{vT1}
    s_lshl_b32 s{sTMP}, s{sWST}, 2
    s_sub_u32 s{sTMP}, s{sTMP}, 1024
    v_add_u32 v{vWA+1}, s{sTMP}, v{vWA}
    v_add_u32 v{vWA+2}, s{sTMP}, v{vWA+1}
    v_add_u32 v{vWA+3}, s{sTMP}, v{vWA+2}
    ''')
    a(f'''
    s_lshl_b32 s{sXO}, s{sTB}, 2
    s_add_u32 s{sXO}, s{sXO}, s{sWV}
    s_lshl_b32 s{sXO}, s{sXO}, 15          ; (tb*128 + 32w)*1024
    s_lshl_b32 s{sTMP}, s{sWV}, 4
    s_mul_i32 s{sWO}, s{sTMP}, s{sWST}     ; 16w*stride
    s_cmp_lt_u32 s{sFB}, 12
    s_cselect_b32 s{sTMP}, 0, 12
    s_sub_u32 s{sTMP}, s{sFB}, s{sTMP}
    s_lshl_b32 s{sTMP}, s{sTMP}, 8
    s_add_u32 s{sWO}, s{sWO}, s{sTMP}
    s_lshl_b32 s{sM0X}, s{sWV}, 12
    s_add_u32 s{sM0W}, s{sM0X}, 16384
    s_waitcnt lgkmcnt(0)
    ''')
    srd(a, SX, 4, 2097152)
    a(f'''
    s_cmp_lt_u32 s{sFB}, 12
    s_cselect_b32 s{SW}, s6, s8
    s_cselect_b32 s{SW+1}, s7, s9
    s_lshl_b32 s{SW+2}, s{sWST}, 9
    s_mov_b32 s{SW+3}, 0x00020000
    s_cmp_lt_u32 s{sFB}, 4
    s_cselect_b32 s{SE}, s52, s54
    s_cselect_b32 s{SE+1}, s53, s55
    s_mov_b32 s{SE+2}, 16384
    s_cmp_lt_u32 s{sFB}, 8
    s_cselect_b32 s{SE}, s{SE}, s56
    s_cselect_b32 s{SE+1}, s{SE+1}, s57
    s_cselect_b32 s{SE+2}, s{SE+2}, 1024
    s_mov_b32 s{SE+3}, 0x00020000
    ''')
    srd(a, SWS, 12, WS_SIZE)
    def dma_chunk(c):
        slot = (c & 3) * 32768
        a(f's_add_u32 m0, s{sM0X}, {slot}')
        a('s_nop 0')
        for i in range(4):
            a(f'buffer_load_dwordx4 v{vXA+i}, s[{SX}:{SX+3}], s{sXO} offen offset:{i*1024} lds')
        a(f's_add_u32 m0, s{sM0W}, {slot}')
        a(f's_add_u32 s{sXO}, s{sXO}, 128')
        for i in range(4):
            a(f'buffer_load_dwordx4 v{vWA+i}, s[{SW}:{SW+3}], s{sWO} offen offset:{i*1024} lds')
        a(f's_add_u32 s{sWO}, s{sWO}, s{sWSTEP}')
    dma_chunk(0)
    a(f's_add_u32 m0, s{sM0X}, {EOFF}')
    a('s_nop 0')
    for i in range(4):
        a(f'buffer_load_dwordx4 v{vL16}, s[{SE}:{SE+3}], s{sM0X} offen offset:{i*1024} lds')
    dma_chunk(1); dma_chunk(2); dma_chunk(3)
    a(f'''
    v_and_b32 v{vT0}, 31, v{vLANE}
    v_lshrrev_b32 v{vT1}, 5, v{vLANE}
    v_bfe_u32 v{vT2}, v{vLANE}, 1, 3
    v_xor_b32 v{vT1}, v{vT1}, v{vT2}
    v_lshlrev_b32 v{vT1}, 4, v{vT1}
    v_lshl_add_u32 v{vT0}, v{vT0}, 7, v{vT1}
    s_and_b32 s{sTMP}, s{sWV}, 1
    s_lshl_b32 s{sTMP}, s{sTMP}, 1
    s_add_u32 s{sT0}, s{sTMP}, s{sFLIP}
    s_xor_b32 s{sT1}, s{sT0}, 1
    s_lshl_b32 s{sTMP}, s{sT0}, 12
    v_add_u32 v{vXR}, s{sTMP}, v{vT0}
    ''')
    for ks in range(1, 4):
        a(f'v_xor_b32 v{vXR+ks}, {ks*32}, v{vXR}')
    for ks in range(4):
        a(f'v_xor_b32 v{vXR+4+ks}, 4096, v{vXR+ks}')
    for i in range(8):
        a(f'v_add_u32 v{vXR+8+i}, 65536, v{vXR+i}')
    a(f'''
    s_lshl_b32 s{sTMP}, s{sTB}, 2
    s_add_u32 s{sT0}, s{sT0}, s{sTMP}
    s_add_u32 s{sT1}, s{sT1}, s{sTMP}
    ''')
    a(f'''
    v_bfe_u32 v{vT0}, v{vLANE}, 2, 2          ; r
    v_lshrrev_b32 v{vT1}, 5, v{vLANE}         ; hh
    v_lshl_add_u32 v{vT1}, v{vT1}, 3, v{vT0}  ; 8hh + r
    s_lshr_b32 s{sTMP}, s{sWV}, 1
    s_lshl_b32 s{sTMP}, s{sTMP}, 1
    v_xor_b32 v{vT0}, s{sTMP}, v{vT0}         ; u0 ^ r
    v_lshlrev_b32 v{vT0}, 6, v{vT0}
    v_lshl_add_u32 v{vT0}, v{vT1}, 8, v{vT0}
    v_bfe_u32 v{vT2}, v{vLANE}, 4, 1
    v_lshl_add_u32 v{vT0}, v{vT2}, 5, v{vT0}
    v_and_b32 v{vT2}, 3, v{vLANE}
    v_lshl_add_u32 v{vWR}, v{vT2}, 3, v{vT0}
    v_xor_b32 v{vWR+1}, 64, v{vWR}
    v_add_u32 v{vWR+2}, 65536, v{vWR}
    v_add_u32 v{vWR+3}, 65536, v{vWR+1}
    ''')
    a(f'''
    v_lshlrev_b32 v{vT2}, 3, v{vT2}
    v_lshl_add_u32 v{vER}, v{vT1}, 5, v{vT2}
    v_lshrrev_b32 v{vT1}, 5, v{vLANE}
    v_lshlrev_b32 v{vT1}, 4, v{vT1}
    s_cmp_lt_u32 s{sFB}, 8
    s_cselect_b64 vcc, -1, 0
    v_cndmask_b32 v{vER}, v{vT1}, v{vER}, vcc
    v_add_u32 v{vER}, {EOFF}, v{vER}
    ''')
    a(f'''
    s_bfe_u32 s{sTMP}, s{sFB}, 0x10001
    s_lshr_b32 s{sTMP2}, s{sFB}, 2
    s_cmp_eq_u32 s{sTMP2}, 2
    s_cbranch_scc1 L1_vmain
    s_cmp_eq_u32 s{sTMP2}, 3
    s_cbranch_scc1 L1_var_q_none
    s_cmp_lg_u32 s{sTMP}, s{sWV}
    s_cbranch_scc1 L1_var_q_none
    s_cmp_eq_u32 s{sTMP2}, 0
    s_cbranch_scc1 L1_var_q_kb
    s_branch L1_var_q_vb
    L1_vmain:
    s_cmp_lg_u32 s{sTMP}, s{sWV}
    s_cbranch_scc1 L1_var_v_none
    s_branch L1_var_v_g
    ''')
    def reads(c, ks, extra):
        buf = (c*4 + ks) & 1
        hs = (c & 3) >> 1
        so = (c & 1) * 32768
        out = []
        for j in range(2):
            out.append(f'ds_read_b128 {vr(vXF+8*buf+4*j,4)}, v{vXR+8*hs+4*j+ks} offset:{so}')
        for u in range(2):
            for j2 in range(2):
                out.append(f'ds_read_b64_tr_b16 {vr(vWF+8*buf+4*u+2*j2,2)}, v{vWR+2*hs+u} offset:{so+16384+ks*4096+j2*1024}')
        if extra in ('kb', 'vb'):
            for j2 in range(2):
                out.append(f'ds_read_b64_tr_b16 {vr(vEF+4*buf+2*j2,2)}, v{vER} offset:{c*2048+ks*512+j2*128}')
        elif extra == 'g':
            out.append(f'ds_read_b128 {vr(vEF+4*buf,4)}, v{vER} offset:{c*128+ks*32}')
        return out
    def mfmas(c, ks, main, extra):
        buf = (c*4 + ks) & 1
        first = (c == 0 and ks == 0)
        out = []
        for j in range(2):
            for u in range(2):
                d = vACC + 32*j + 16*u
                X = vr(vXF+8*buf+4*j, 4); W = vr(vWF+8*buf+4*u, 4)
                A, B = (W, X) if main == 'q' else (X, W)
                out.append(f'v_mfma_f32_32x32x16_bf16 {vr(d,16)}, {A}, {B}, {"0" if first else vr(d,16)}')
        if extra:
            X = vr(vXF+8*buf, 4); E = vr(vEF+4*buf, 4)
            A, B = (X, E) if extra == 'vb' else (E, X)
            out.append(f'v_mfma_f32_32x32x16_bf16 {vr(vACE,16)}, {A}, {B}, {"0" if first else vr(vACE,16)}')
        return out
    def interleave(m, r):
        out = []; r = list(r)
        for x in m:
            out.append(x)
            for _ in range(2):
                if r: out.append(r.pop(0))
        return out + r
    def variant(main, extra):
        a(f'L1_var_{main}_{extra or "none"}:')
        a('s_waitcnt vmcnt(24)')
        a('s_barrier')
        r0 = reads(0, 0, extra)
        nr = len(r0)
        for x in r0: a(x)
        for c in range(8):
            for ks in range(3):
                rd = reads(c, ks+1, extra)
                m = mfmas(c, ks, main, extra)
                for x in rd[:2]: a(x)
                a(f's_waitcnt lgkmcnt(2)')
                for x in interleave(m, rd[2:]): a(x)
            a('s_waitcnt lgkmcnt(0)')
            m = mfmas(c, 3, main, extra)
            if c < 7:
                younger = min(c+3, 7) - (c+1)
                a(f's_waitcnt vmcnt({8*younger})')
                a('s_barrier')
                rd = reads(c+1, 0, extra)
                a(m[0])
                for x in rd[:3]: a(x)
                a(m[1])
                for x in rd[3:]: a(x)
                a(m[2])
                if c + 4 <= 7: dma_chunk(c+4)
                for x in m[3:]: a(x)
            else:
                for x in m: a(x)
        a.nop(12)
        if extra == 'kb':
            for i in range(4):
                a(f'v_cvt_pk_bf16_f32 v{vACE+i}, v{vACE+2*i}, v{vACE+2*i+1}')
            a(f'v_and_b32 v{vT0}, 31, v{vLANE}')
            swap23(a, f'v{vT1}', f'v{vT0}', f'v{vT2}')
            a(f'''
            v_and_b32 v{vT0}, 32, v{vLANE}
            v_add_u32 v{vT1}, v{vT1}, v{vT0}
            v_lshlrev_b32 v{vT1}, 4, v{vT1}
            s_lshl_b32 s{sTMP}, s{sT0}, 11
            s_add_u32 s{sTMP}, s{sTMP}, {WS_KV + 32*131072}
            buffer_store_dwordx4 {vr(vACE,4)}, v{vT1}, s[{SWS}:{SWS+3}], s{sTMP} offen
            ''')
        elif extra == 'vb':
            for i in range(8):
                a(f'v_cvt_pk_bf16_f32 v{vACE+i}, v{vACE+2*i}, v{vACE+2*i+1}')
            a(f'''
            v_and_b32 v{vT0}, 15, v{vLANE}
            v_lshrrev_b32 v{vT1}, 5, v{vLANE}
            v_lshl_add_u32 v{vT1}, v{vT1}, 4, v{vT0}
            v_lshlrev_b32 v{vT1}, 4, v{vT1}
            s_lshl_b32 s{sTMP}, s{sT0}, 11
            s_add_u32 s{sTMP}, s{sTMP}, {WS_KV + 32*131072 + 1024}
            buffer_store_dwordx4 {vr(vACE,4)}, v{vT1}, s[{SWS}:{SWS+3}], s{sTMP} offen
            buffer_store_dwordx4 {vr(vACE+4,4)}, v{vT1}, s[{SWS}:{SWS+3}], s{sTMP} offen offset:512
            ''')
        elif extra == 'g':
            a(f'''
            v_mul_f32 v{vACE}, {hex(f2u(-1.4426950408889634))}, v{vACE}
            v_exp_f32 v{vACE}, v{vACE}
            v_and_b32 v{vT1}, 31, v{vLANE}
            v_add_f32 v{vACE}, 1.0, v{vACE}
            v_rcp_f32 v{vACE}, v{vACE}
            v_lshlrev_b32 v{vT1}, 2, v{vT1}
            s_lshl_b32 s{sTMP}, s{sT0}, 7
            s_add_u32 s{sTMP}, s{sTMP}, {WS_G}
            buffer_store_dword v{vACE}, v{vT1}, s[{SWS}:{SWS+3}], s{sTMP} offen
            ''')
        a(f's_branch L1_epi_{main}')
    variant('q', None); variant('q', 'kb'); variant('q', 'vb')
    variant('v', None); variant('v', 'g')
    a('L1_epi_q:')
    a(f'''
    s_lshr_b32 s{sTMP2}, s{sFB}, 2
    s_and_b32 s{sTMP}, s{sFB}, 3
    s_lshl_b32 s{sTMP}, s{sTMP}, 3
    s_lshr_b32 s{sBASE}, s{sWV}, 1
    s_lshl_b32 s{sBASE}, s{sBASE}, 2
    s_add_u32 s{sTMP}, s{sTMP}, s{sBASE}
    s_cmp_eq_u32 s{sTMP2}, 3
    s_cselect_b32 s{sBASE}, 32, 0
    s_add_u32 s{sTMP}, s{sTMP}, s{sBASE}
    s_cmp_eq_u32 s{sTMP2}, 1
    s_cselect_b32 s{sHS}, 17, 16
    s_cselect_b32 s{sTS}, 11, 10
    s_cselect_b32 s{sBASE}, {WS_KV}, {WS_Q}
    s_cselect_b32 s{sSC}, 1.0, {hex(f2u(CSCALE))}
    s_cselect_b64 vcc, -1, 0
    s_lshl_b32 s{sTMP}, s{sTMP}, s{sHS}
    s_add_u32 s{sBASE}, s{sBASE}, s{sTMP}
    s_lshl_b32 s{sT0}, s{sT0}, s{sTS}
    s_lshl_b32 s{sT1}, s{sT1}, s{sTS}
    s_lshl_b32 s{sHS}, 1, s{sHS}
    v_and_b32 v{vT0}, 31, v{vLANE}
    ''')
    swap23(a, f'v{vT1}', f'v{vT0}', f'v{vT2}')
    a(f'''
    v_and_b32 v{vT0}, 32, v{vLANE}
    v_add_u32 v{vT1}, v{vT1}, v{vT0}
    v_lshlrev_b32 v{vT1}, 4, v{vT1}
    v_cndmask_b32 v{vST}, v{vL16}, v{vT1}, vcc
    ''')
    for j in range(2):
        a(f's_add_u32 s{sTMP}, s{sBASE}, s{sT0 if j == 0 else sT1}')
        for u in range(2):
            d = vACC + 32*j + 16*u
            for i in range(8):
                a(f'v_pk_mul_f32 {vr(d+2*i,2)}, {vr(d+2*i,2)}, s[{sSC-1}:{sSC}] op_sel:[0,1] op_sel_hi:[1,1]')
            for i in range(8):
                a(f'v_cvt_pk_bf16_f32 v{d+i}, v{d+2*i}, v{d+2*i+1}')
            a(f'buffer_store_dwordx4 {vr(d,4)}, v{vST}, s[{SWS}:{SWS+3}], s{sTMP} offen')
            a(f's_add_u32 s{sTMP}, s{sTMP}, s{sHS}')
            a(f'buffer_store_dwordx4 {vr(d+4,4)}, v{vST}, s[{SWS}:{SWS+3}], s{sTMP} offen')
            a(f's_add_u32 s{sTMP}, s{sTMP}, s{sHS}')
    a('s_endpgm')
    a('L1_epi_v:')
    a(f'''
    s_and_b32 s{sTMP}, s{sFB}, 3
    s_lshl_b32 s{sTMP}, s{sTMP}, 3
    s_lshr_b32 s{sBASE}, s{sWV}, 1
    s_lshl_b32 s{sBASE}, s{sBASE}, 2
    s_add_u32 s{sTMP}, s{sTMP}, s{sBASE}
    s_lshl_b32 s{sBASE}, s{sTMP}, 17
    s_add_u32 s{sBASE}, s{sBASE}, {WS_KV + 1024}
    s_lshl_b32 s{sT0}, s{sT0}, 11
    s_lshl_b32 s{sT1}, s{sT1}, 11
    v_and_b32 v{vT0}, 15, v{vLANE}
    v_lshrrev_b32 v{vT1}, 5, v{vLANE}
    v_lshl_add_u32 v{vT1}, v{vT1}, 4, v{vT0}
    v_lshlrev_b32 v{vT1}, 4, v{vT1}
    v_bfe_u32 v{vT0}, v{vLANE}, 4, 1
    v_lshl_add_u32 v{vST}, v{vT0}, 17, v{vT1}
    ''')
    for j in range(2):
        a(f's_add_u32 s{sTMP}, s{sBASE}, s{sT0 if j == 0 else sT1}')
        for u in range(2):
            d = vACC + 32*j + 16*u
            for i in range(8):
                a(f'v_cvt_pk_bf16_f32 v{d+i}, v{d+2*i}, v{d+2*i+1}')
            a(f'buffer_store_dwordx4 {vr(d,4)}, v{vST}, s[{SWS}:{SWS+3}], s{sTMP} offen')
            a(f'buffer_store_dwordx4 {vr(d+4,4)}, v{vST}, s[{SWS}:{SWS+3}], s{sTMP} offen offset:512')
            a(f's_add_u32 s{sTMP}, s{sTMP}, {2*131072}')
    a('L1_done:')
    a('s_endpgm')
    return a.text(), kd(name, NV, 0), f'; @launch kernel={name} grid=(256,1,1) block=(256,1,1) lds={EOFF+16384}'

def gen_k2(DELTA=60.0):
    a = Asm()
    name = 'attn_kernel'
    a.lines.append(head(name))
    SWS, SKV = 8, 12
    sWV, sHD, sQB, sKH, sTMP, sTMP2, sIT, sBAR, sFB, sQO = 16, 17, 18, 19, 20, 21, 22, 23, 24, 25
    sMASK = 40
    vKA, vVA, vIDX, vG, vL16, vT0, vT1, vT2, vT3 = 1, 2, 3, 4, 5, 6, 7, 8, 9
    vKA0, vVA0 = 10, 11
    vMX = 12
    negm = lambda q: 16 + 16*q
    S = lambda b: 80 + 16*b
    O = lambda q: 112 + 16*q
    NV = 176
    Q = lambda q: 4*q
    KV = lambda s: 16 + 12*s
    NA = 40
    a(f'''
    s_cmp_ge_u32 s2, 256
    s_cbranch_scc1 L2_done
    s_load_dwordx2 s[4:5], s[0:1], 88
    v_lshrrev_b32 v{vT0}, 6, v0
    v_and_b32 v{vT1}, 63, v0
    v_readfirstlane_b32 s{sWV}, v{vT0}
    v_lshlrev_b32 v{vL16}, 4, v{vT1}
    s_and_b32 s{sTMP}, s2, 7
    s_lshr_b32 s{sTMP2}, s2, 3
    s_and_b32 s{sQB}, s{sTMP2}, 3
    s_lshr_b32 s{sTMP2}, s{sTMP2}, 2       ; hj 0..7
    s_lshl_b32 s{sHD}, s{sTMP}, 2
    s_and_b32 s{sTMP}, s{sTMP2}, 3
    s_add_u32 s{sHD}, s{sHD}, s{sTMP}
    s_lshr_b32 s{sTMP2}, s{sTMP2}, 2
    s_lshl_b32 s{sTMP2}, s{sTMP2}, 5
    s_add_u32 s{sHD}, s{sHD}, s{sTMP2}     ; head 0..63
    s_lshr_b32 s{sKH}, s{sWV}, 2
    s_min_u32 s{sTMP}, s{sHD}, 32
    s_lshl_b32 s{sTMP}, s{sTMP}, 17
    s_add_u32 s{sTMP}, s{sTMP}, {WS_KV}
    s_waitcnt lgkmcnt(0)
    s_add_u32 s{SKV}, s4, s{sTMP}
    s_addc_u32 s{SKV+1}, s5, 0
    s_mov_b32 s{SKV+2}, 131072
    s_mov_b32 s{SKV+3}, 0x00020000
    ''')
    srd(a, SWS, 4, WS_SIZE)
    a(f'''
    s_and_b32 s{sTMP}, s{sWV}, 3
    s_lshl_b32 s{sTMP2}, s{sKH}, 5
    s_add_u32 s{sTMP2}, s{sTMP2}, s{sTMP}
    s_lshl_b32 s{sTMP2}, s{sTMP2}, 11
    s_mov_b32 m0, s{sTMP2}
    s_lshl_b32 s{sQO}, s{sQB}, 2
    buffer_load_dwordx4 v{vL16}, s[{SKV}:{SKV+3}], s{sTMP2} offen lds
    buffer_load_dwordx4 v{vL16}, s[{SKV}:{SKV+3}], s{sTMP2} offen offset:1024 lds
    s_add_u32 s{sQO}, s{sQO}, s{sTMP}
    s_lshl_b32 s{sQO}, s{sQO}, 2
    s_lshl_b32 s{sTMP2}, s{sHD}, 6
    s_add_u32 s{sTMP2}, s{sTMP2}, s{sQO}
    s_lshl_b32 s{sTMP2}, s{sTMP2}, 10
    ''')
    for q in range(4):
        a(f'buffer_load_dwordx4 {ar(Q(q),4)}, v{vL16}, s[{SWS}:{SWS+3}], s{sTMP2} offen offset:{q*1024}')
    a(f'''
    s_lshl_b32 s{sTMP2}, s{sKH}, 1
    s_add_u32 s{sQO}, s{sQO}, s{sTMP2}
    s_lshl_b32 s{sTMP2}, s{sQO}, 7
    s_add_u32 s{sTMP2}, s{sTMP2}, {WS_G}
    v_and_b32 v{vT0}, 31, v{vT1}
    v_lshlrev_b32 v{vT0}, 2, v{vT0}
    buffer_load_dword v{vG}, v{vT0}, s[{SWS}:{SWS+3}], s{sTMP2} offen
    buffer_load_dword v0, v{vT0}, s[{SWS}:{SWS+3}], s{sTMP2} offen offset:128
    s_mul_i32 s{sTMP}, s{sTMP}, 7
    s_lshl_b32 s{sTMP2}, s{sKH}, 5
    s_add_u32 s{sTMP2}, s{sTMP2}, s{sTMP}
    s_add_u32 s{sTMP2}, s{sTMP2}, 4
    s_lshl_b32 s{sTMP2}, s{sTMP2}, 11
    ''')
    for i in range(14):
        if i % 4 == 0:
            if i: a(f's_add_u32 s{sTMP2}, s{sTMP2}, 4096')
            a(f's_mov_b32 m0, s{sTMP2}')
            a('s_nop 0')
        a(f'buffer_load_dwordx4 v{vL16}, s[{SKV}:{SKV+3}], s{sTMP2} offen offset:{(i%4)*1024} lds')
    a(f'''
    s_lshl_b32 s{sTMP}, s{sKH}, 16
    v_add_u32 v{vKA0}, s{sTMP}, v{vL16}
    v_and_b32 v{vT0}, 15, v{vT1}
    v_lshrrev_b32 v{vT2}, 5, v{vT1}
    v_lshl_add_u32 v{vT0}, v{vT2}, 4, v{vT0}
    v_lshlrev_b32 v{vT0}, 4, v{vT0}
    v_add_u32 v{vVA0}, s{sTMP}, v{vT0}
    v_mov_b32 v{vIDX}, 0xdddddddd
    v_and_b32 v{vT0}, 27, v{vT1}
    v_cmp_eq_u32 vcc, 16, v{vT0}
    v_mov_b32 v{vT2}, 0x3f803f80
    s_mov_b32 s{sMASK}, 0xffff
    s_mov_b32 s{sMASK+1}, 0xffff
    v_cndmask_b32 v{vT2}, 0, v{vT2}, vcc
    s_mov_b32 s{sBAR}, 1
    s_mov_b32 s{sFB}, 0
    ''')
    for s in range(2):
        for i in range(8):
            a(f'v_accvgpr_write_b32 a{KV(s)+4+i}, v{vT2}')
    a('s_waitcnt vmcnt(14)')
    a('s_barrier')
    def maxtree(dst, r):
        a(f'v_max3_f32 {dst}, v{r}, v{r+1}, v{r+2}')
        a(f'v_max3_f32 v{vT0}, v{r+3}, v{r+4}, v{r+5}')
        a(f'v_max3_f32 v{vT2}, v{r+6}, v{r+7}, v{r+8}')
        a(f'v_max3_f32 v{vT3}, v{r+9}, v{r+10}, v{r+11}')
        a(f'v_max3_f32 {dst}, {dst}, v{r+12}, v{r+13}')
        a(f'v_max3_f32 v{vT0}, v{vT0}, v{r+14}, v{r+15}')
        a(f'v_max3_f32 {dst}, {dst}, v{vT2}, v{vT3}')
        a(f'v_max_f32 {dst}, {dst}, v{vT0}')
    a(f'ds_read_b128 {ar(KV(0),4)}, v{vKA0}')
    a('s_waitcnt lgkmcnt(0)')
    for q in range(4):
        a(f'v_mfma_f32_32x32x16_bf16 {vr(negm(q),16)}, {ar(KV(0),4)}, {ar(Q(q),4)}, 0')
    a.nop(9)
    for q in range(4):
        if q == 3: a.nop(4)
        maxtree(f'v{vMX+q}', negm(q))
    a(f's_mov_b32 s{sTMP}, {hex(f2u(DELTA))}')
    a('L2_setm:')
    for q in range(4):
        a(f'v_mov_b32 v{vT0}, v{vMX+q}')
        a.nop(2)
        a(f'v_permlane32_swap_b32 v{vT0}, v{vMX+q}')
        a.nop(1)
        a(f'v_max_f32 v{vT0}, v{vT0}, v{vMX+q}')
        a(f'v_ceil_f32 v{vT0}, v{vT0}')
        a(f'v_add_f32 v{vT0}, s{sTMP}, v{vT0}')
        a(f'v_sub_f32 v{negm(q)}, 0, v{vT0}')
        a(f'v_mov_b32 v{negm(q)+1}, v{negm(q)}')
        for i in range(1, 8):
            a(f'v_pk_mov_b32 {vr(negm(q)+2*i,2)}, {vr(negm(q),2)}, {vr(negm(q),2)}')
    a(f'''
    v_mov_b32 v{vKA}, v{vKA0}
    v_mov_b32 v{vVA}, v{vVA0}
    ds_read_b128 {ar(KV(0),4)}, v{vKA0}
    s_mov_b64 exec, s[{sMASK}:{sMASK+1}]
    ds_read_b128 {ar(KV(0)+4,4)}, v{vVA0} offset:1024
    ds_read_b128 {ar(KV(0)+8,4)}, v{vVA0} offset:1536
    s_mov_b64 exec, -1
    s_mov_b32 s{sIT}, 0
    ''')
    for q in range(4):
        for i in range(9):
            a(f'v_mov_b32 v{O(q)+i}, 0')
    for i in range(8):
        a(f'v_mov_b32 v{S(1)+8+i}, 0')
    a('s_waitcnt lgkmcnt(0)')
    a(f'v_mfma_f32_32x32x16_bf16 {vr(S(0),16)}, {ar(KV(0),4)}, {ar(Q(0),4)}, {vr(negm(0),16)}')
    a.nop(12)
    a('.p2align 6')
    a('L2_loop:')
    steps = [(t, q) for t in range(2) for q in range(4)]
    n = len(steps)
    for i, (t, q) in enumerate(steps):
        b = i % 2
        tp, qp = steps[(i-1) % n]; tn, qn = steps[(i+1) % n]
        e = [f'v_exp_f32 v{S(b)+j}, v{S(b)+j}' for j in range(16)]
        smf2 = f'v_smfmac_f32_32x32x32_bf16 {vr(O(qp),16)}, {ar(KV(tp)+8,4)}, {vr(S(b^1)+8,8)}, v{vIDX}'
        qk = f'v_mfma_f32_32x32x16_bf16 {vr(S(b^1),16)}, {ar(KV(tn),4)}, {ar(Q(qn),4)}, {vr(negm(qn),16)}'
        smf1 = f'v_smfmac_f32_32x32x32_bf16 {vr(O(q),16)}, {ar(KV(t)+4,4)}, {vr(S(b),8)}, v{vIDX}'
        for x in e[0:2]: a(x)
        a(smf2)
        if q == 0:
            s = (t+1) % 2
            off = (t+1)*2048
            if t == 1:
                lab = a.label('L2_nobar')
                a(f's_cmp_lg_u32 s{sIT}, s{sBAR}')
                a(f's_cbranch_scc1 {lab}')
                a('s_waitcnt vmcnt(0)')
                a('s_barrier')
                a(f's_mov_b32 s{sBAR}, -1')
                a(f'{lab}:')
            a(f'ds_read_b128 {ar(KV(s),4)}, v{vKA} offset:{off}')
            a(f's_mov_b64 exec, s[{sMASK}:{sMASK+1}]')
            a(f'ds_read_b128 {ar(KV(s)+4,4)}, v{vVA} offset:{off+1024}')
            a(f'ds_read_b128 {ar(KV(s)+8,4)}, v{vVA} offset:{off+1536}')
            a('s_mov_b64 exec, -1')
        for x in e[2:5]: a(x)
        if q == 3: a('s_waitcnt lgkmcnt(0)')
        a(qk)
        for x in e[5:10]: a(x)
        a(smf1)
        for x in e[10:16]: a(x)
        if i == n-2:
            a(f'v_add_u32 v{vKA}, 4096, v{vKA}')
            a(f'v_add_u32 v{vVA}, 4096, v{vVA}')
    a(f'''
    s_add_u32 s{sIT}, s{sIT}, 1
    s_cmp_lt_u32 s{sIT}, 16
    s_cbranch_scc1 L2_loop
    s_nop 1
    v_smfmac_f32_32x32x32_bf16 {vr(O(3),16)}, {ar(KV(1)+8,4)}, {vr(S(1)+8,8)}, v{vIDX}
    s_cmp_lg_u32 s{sFB}, 0
    ''')
    a.nop(12)
    a('s_cbranch_scc1 L2_fin')
    a(f's_mov_b32 s{sTMP}, {hex(f2u(2.0**100))}')
    for q in range(4):
        a(f'v_fma_f32 v{vMX+q}, v{O(q)}, 0, v{O(q)+8}')
        for i in range(1, 8):
            a(f'v_fma_f32 v{vMX+q}, v{O(q)+i}, 0, v{vMX+q}')
    for q in range(4):
        a(f'v_cmp_nle_f32 s[{28+2*q}:{29+2*q}], v{vMX+q}, s{sTMP}')
    a(f'''
    s_nop 1
    s_or_b64 s[28:29], s[28:29], s[30:31]
    s_or_b64 s[32:33], s[32:33], s[34:35]
    s_or_b64 s[28:29], s[28:29], s[32:33]
    s_cmp_eq_u64 s[28:29], 0
    s_cbranch_scc1 L2_fin
    ''')
    a(f'''
    s_mov_b32 s{sFB}, 1
    s_mov_b32 s{sIT}, 0
    v_mov_b32 v{vKA}, v{vKA0}
    ''')
    for q in range(4):
        a(f'v_mov_b32 v{vMX+q}, 0xff800000')
    a('L2_maxloop:')
    a(f'ds_read_b128 {ar(KV(0),4)}, v{vKA}')
    a('s_waitcnt lgkmcnt(0)')
    for q in range(4):
        a(f'v_mfma_f32_32x32x16_bf16 {vr(negm(q),16)}, {ar(KV(0),4)}, {ar(Q(q),4)}, 0')
    a.nop(13)
    for q in range(4):
        maxtree(f'v{vKA0 if False else vVA}', negm(q))
        a(f'v_max_f32 v{vMX+q}, v{vMX+q}, v{vVA}')
    a(f'''
    v_add_u32 v{vKA}, 2048, v{vKA}
    s_add_u32 s{sIT}, s{sIT}, 1
    s_cmp_lt_u32 s{sIT}, 32
    s_cbranch_scc1 L2_maxloop
    s_mov_b32 s{sTMP}, 0
    s_branch L2_setm
    ''')
    a('L2_fin:')
    a(f'''
    s_waitcnt lgkmcnt(0)
    s_barrier
    s_mul_i32 s{sTMP}, s{sWV}, 5120
    v_add_u32 v{vKA}, s{sTMP}, v{vL16}
    v_lshrrev_b32 v{vVA}, 1, v{vL16}
    v_add_u32 v{vVA}, s{sTMP}, v{vVA}
    s_xor_b32 s{sTMP}, s{sWV}, 4
    s_mul_i32 s{sTMP}, s{sTMP}, 5120
    v_add_u32 v{vKA0}, s{sTMP}, v{vL16}
    v_lshrrev_b32 v{vVA0}, 1, v{vL16}
    v_add_u32 v{vVA0}, s{sTMP}, v{vVA0}
    s_lshl_b32 s{sTMP}, s{sQO}, 6
    s_add_u32 s{sTMP}, s{sTMP}, s{sHD}
    s_lshl_b32 s{sTMP}, s{sTMP}, 10
    s_add_u32 s{sTMP}, s{sTMP}, {WS_O}
    s_cmp_lt_u32 s{sHD}, 32
    s_cbranch_scc1 L2_gateok
    v_sub_f32 v{vG}, 1.0, v{vG}
    v_sub_f32 v0, 1.0, v0
    L2_gateok:
    s_cmp_eq_u32 s{sKH}, 0
    s_cbranch_scc0 L2_fin1
    ''')
    def fin(kh):
        keep = [2*kh, 2*kh+1]; send = [2*(1-kh), 2*(1-kh)+1]
        for i, q in enumerate(send):
            a(f'v_mov_b32 v{O(q)+9}, v{negm(q)}')
            a(f'ds_write_b128 v{vKA}, {vr(O(q),4)} offset:{i*2560}')
            a(f'ds_write_b128 v{vKA}, {vr(O(q)+4,4)} offset:{i*2560+1024}')
            a(f'ds_write_b64 v{vVA}, {vr(O(q)+8,2)} offset:{i*2560+2048}')
        a('s_waitcnt lgkmcnt(0)')
        a('s_barrier')
        for i, q in enumerate(keep):
            p = S(i)
            a(f'ds_read_b128 {vr(p,4)}, v{vKA0} offset:{i*2560}')
            a(f'ds_read_b128 {vr(p+4,4)}, v{vKA0} offset:{i*2560+1024}')
            a(f'ds_read_b64 {vr(p+8,2)}, v{vVA0} offset:{i*2560+2048}')
        for i, q in enumerate(keep):
            p = S(i); o = O(q); g = vG if i == 0 else 0
            a(f's_waitcnt lgkmcnt({3 if i == 0 else 0})')
            a(f'''
            v_min_f32 v{vT0}, v{negm(q)}, v{p+9}
            v_sub_f32 v{vT2}, v{vT0}, v{negm(q)}
            v_sub_f32 v{vT3}, v{vT0}, v{p+9}
            v_max_f32 v{vT2}, 0xc3960000, v{vT2}
            v_max_f32 v{vT3}, 0xc3960000, v{vT3}
            v_cvt_i32_f32 v{vT2}, v{vT2}
            v_cvt_i32_f32 v{vT3}, v{vT3}
            v_ldexp_f32 v{o+8}, v{o+8}, v{vT2}
            v_ldexp_f32 v{p+8}, v{p+8}, v{vT3}
            v_add_f32 v{vT0}, v{o+8}, v{p+8}
            v_rcp_f32 v{vT0}, v{vT0}
            s_nop 0
            v_mul_f32 v{vT0}, v{vT0}, v{g}
            v_ldexp_f32 v{vT2}, v{vT0}, v{vT2}
            v_ldexp_f32 v{vT3}, v{vT0}, v{vT3}
            ''')
            for k in range(8):
                a(f'v_mul_f32 v{o+k}, v{o+k}, v{vT2}')
            for k in range(8):
                a(f'v_fma_f32 v{o+k}, v{p+k}, v{vT3}, v{o+k}')
            for k in range(4):
                a(f'v_cvt_pk_bf16_f32 v{o+k}, v{o+2*k}, v{o+2*k+1}')
            a(f'buffer_store_dwordx4 {vr(o,4)}, v{vL16}, s[{SWS}:{SWS+3}], s{sTMP} offen')
            if i == 0: a(f's_add_u32 s{sTMP}, s{sTMP}, 65536')
        a('s_endpgm')
    fin(0)
    a('L2_fin1:')
    fin(1)
    a('L2_done:')
    a('s_endpgm')
    return a.text(), kd(name, NV, NA), f'; @launch kernel={name} grid=(256,1,1) block=(512,1,1) lds={131072+4096}'

def gen_k3():
    a = Asm()
    name = 'outp_kernel'
    a.lines.append(head(name))
    SWS, SW, SOUT = 16, 20, 24
    sWV, sTB, sNB, sTT, sKQ, sTMP, sTMP2, sOO, sWO = 28, 29, 30, 31, 32, 33, 34, 35, 36
    vLANE, vL16, vT0, vT1, vT2 = 1, 2, 3, 4, 5
    vWA = 6
    vWR = 10
    vSC, vSR = 12, 13
    vWF = 16
    vACC = 32
    vOF = 64
    NV = 128
    a(f'''
    s_cmp_ge_u32 s2, 256
    s_cbranch_scc1 L3_done
    s_load_dwordx2 s[4:5], s[0:1], 16
    s_load_dwordx2 s[6:7], s[0:1], 56
    s_load_dwordx2 s[8:9], s[0:1], 72
    s_load_dwordx2 s[10:11], s[0:1], 88
    v_lshrrev_b32 v{vT0}, 6, v0
    v_and_b32 v{vLANE}, 63, v0
    v_readfirstlane_b32 s{sWV}, v{vT0}
    v_lshlrev_b32 v{vL16}, 4, v{vLANE}
    s_and_b32 s{sTMP}, s2, 7
    s_lshr_b32 s{sTMP2}, s2, 3
    s_lshl_b32 s{sTB}, s{sTMP}, 2
    s_and_b32 s{sTMP}, s{sTMP2}, 3
    s_add_u32 s{sTB}, s{sTB}, s{sTMP}
    s_lshr_b32 s{sNB}, s{sTMP2}, 2
    s_and_b32 s{sTT}, s{sWV}, 1
    s_lshr_b32 s{sKQ}, s{sWV}, 1
    ; W DMA: (L>>3)*1024 + (((L>>2)&1) ^ ((L>>4)&1))*64 + (L&3)*16 + 7168*i
    v_lshrrev_b32 v{vT0}, 2, v{vLANE}
    v_lshrrev_b32 v{vT1}, 4, v{vLANE}
    v_xor_b32 v{vT0}, v{vT0}, v{vT1}
    v_and_b32 v{vT0}, 1, v{vT0}
    v_lshlrev_b32 v{vT0}, 6, v{vT0}
    v_and_b32 v{vT1}, 3, v{vLANE}
    v_lshl_add_u32 v{vT0}, v{vT1}, 4, v{vT0}
    v_lshrrev_b32 v{vT1}, 3, v{vLANE}
    v_lshl_add_u32 v{vWA}, v{vT1}, 10, v{vT0}
    v_add_u32 v{vWA+1}, 7168, v{vWA}
    v_add_u32 v{vWA+2}, {2*7168}, v{vWA}
    v_add_u32 v{vWA+3}, {3*7168}, v{vWA}
    s_lshl_b32 s{sOO}, s{sTB}, 1
    s_add_u32 s{sOO}, s{sOO}, s{sTT}
    s_lshl_b32 s{sOO}, s{sOO}, 2
    s_add_u32 s{sOO}, s{sOO}, s{sKQ}
    s_lshl_b32 s{sOO}, s{sOO}, 14
    s_add_u32 s{sOO}, s{sOO}, {WS_O}
    s_and_b32 s{sWO}, s{sKQ}, 1
    s_lshl_b32 s{sWO}, s{sWO}, 2
    s_add_u32 s{sWO}, s{sWO}, s{sTT}
    s_lshl_b32 s{sWO}, s{sWO}, 16
    s_lshl_b32 s{sTMP}, s{sNB}, 7
    s_add_u32 s{sWO}, s{sWO}, s{sTMP}
    s_lshl_b32 s{sTMP}, s{sKQ}, 2
    s_add_u32 s{sTMP}, s{sTMP}, s{sTT}
    s_lshl_b32 s{sTMP}, s{sTMP}, 13
    s_cmp_lt_u32 s{sKQ}, 2
    s_waitcnt lgkmcnt(0)
    s_cselect_b32 s{SW}, s4, s6
    s_cselect_b32 s{SW+1}, s5, s7
    s_mov_b32 s{SW+2}, {512*1024}
    s_mov_b32 s{SW+3}, 0x00020000
    ''')
    srd(a, SWS, 10, WS_SIZE)
    srd(a, SOUT, 8, 2097152)
    for st in range(2):
        for g in range(2):
            a(f's_add_u32 m0, s{sTMP}, {st*16384 + g*4096}')
            a('s_nop 0')
            for i in range(4):
                a(f'buffer_load_dwordx4 v{vWA+i}, s[{SW}:{SW+3}], s{sWO} offen offset:{i*1024} lds')
            a(f's_add_u32 s{sWO}, s{sWO}, {32768 if g == 0 else 32768 + 65536}')
        for g in range(2):
            for i in range(4):
                a(f'buffer_load_dwordx4 {vr(vOF+4*(8*st+4*g+i),4)}, v{vL16}, s[{SWS}:{SWS+3}], s{sOO} offen offset:{i*1024}')
            a(f's_add_u32 s{sOO}, s{sOO}, 4096')
    a(f'''
    v_bfe_u32 v{vT0}, v{vLANE}, 2, 2
    v_lshrrev_b32 v{vT1}, 5, v{vLANE}
    v_lshl_add_u32 v{vT1}, v{vT1}, 2, v{vT0}
    v_lshrrev_b32 v{vT0}, 1, v{vT0}
    v_lshlrev_b32 v{vT0}, 6, v{vT0}
    v_lshl_add_u32 v{vT0}, v{vT1}, 7, v{vT0}
    v_bfe_u32 v{vT1}, v{vLANE}, 4, 1
    v_lshl_add_u32 v{vT0}, v{vT1}, 5, v{vT0}
    v_and_b32 v{vT1}, 1, v{vLANE}
    v_lshl_add_u32 v{vT0}, v{vT1}, 4, v{vT0}
    v_bfe_u32 v{vT1}, v{vLANE}, 1, 1
    v_lshl_add_u32 v{vT0}, v{vT1}, 3, v{vT0}
    s_lshl_b32 s{sTMP}, s{sKQ}, 15
    v_add_u32 v{vWR}, s{sTMP}, v{vT0}
    v_xor_b32 v{vWR+1}, 64, v{vWR}
    ''')
    def reads(hd):
        buf = hd & 1
        return [f'ds_read_b64_tr_b16 {vr(vWF+8*buf+4*u+2*j,2)}, v{vWR+u} offset:{hd*2048+j*1024}' for u in range(2) for j in range(2)]
    for st in range(2):
        a(f's_waitcnt vmcnt({16 if st == 0 else 0})')
        a('s_barrier')
        for x in reads(8*st): a(x)
        for h in range(8):
            hd = 8*st + h
            buf = hd & 1
            if h < 7:
                for x in reads(hd+1): a(x)
                a('s_waitcnt lgkmcnt(4)')
            else:
                a('s_waitcnt lgkmcnt(0)')
            for u in range(2):
                d = vACC + 16*u
                a(f'v_mfma_f32_32x32x16_bf16 {vr(d,16)}, {vr(vWF+8*buf+4*u,4)}, {vr(vOF+4*hd,4)}, {"0" if hd == 0 else vr(d,16)}')
    a(f'''
    s_lshl_b32 s{sTMP}, s{sTT}, 4
    s_add_u32 s{sTMP2}, s{sTMP}, s{sKQ}
    s_lshl_b32 s{sTMP2}, s{sTMP2}, 11
    v_add_u32 v{vSC}, s{sTMP2}, v{vL16}
    s_lshl_b32 s{sTMP2}, s{sKQ}, 2
    s_add_u32 s{sTMP2}, s{sTMP2}, s{sTMP}
    s_lshl_b32 s{sTMP2}, s{sTMP2}, 11
    v_add_u32 v{vSR}, s{sTMP2}, v{vL16}
    s_barrier
    ''')
    a.nop(6)
    for d in range(4):
        a(f'ds_write_b128 v{vSC}, {vr(vACC+8*d,4)} offset:{d*8192}')
        a(f'ds_write_b128 v{vSC}, {vr(vACC+8*d+4,4)} offset:{d*8192+1024}')
    a(f'''
    v_and_b32 v{vT0}, 31, v{vLANE}
    v_lshrrev_b32 v{vT1}, 5, v{vLANE}
    v_lshlrev_b32 v{vT1}, 4, v{vT1}
    v_lshl_add_u32 v{vT0}, v{vT0}, 10, v{vT1}
    s_lshl_b32 s{sTMP}, s{sTB}, 1
    s_add_u32 s{sTMP}, s{sTMP}, s{sTT}
    s_lshl_b32 s{sTMP}, s{sTMP}, 15
    s_lshl_b32 s{sTMP2}, s{sNB}, 7
    s_add_u32 s{sTMP}, s{sTMP}, s{sTMP2}
    s_lshl_b32 s{sTMP2}, s{sKQ}, 5
    s_add_u32 s{sTMP}, s{sTMP}, s{sTMP2}
    s_waitcnt lgkmcnt(0)
    s_barrier
    ''')
    for s in range(4):
        a(f'ds_read_b128 {vr(vOF+8*s,4)}, v{vSR} offset:{s*2048}')
        a(f'ds_read_b128 {vr(vOF+8*s+4,4)}, v{vSR} offset:{s*2048+1024}')
    a('s_waitcnt lgkmcnt(4)')
    for k in range(8):
        a(f'v_add_f32 v{vOF+k}, v{vOF+k}, v{vOF+8+k}')
    a('s_waitcnt lgkmcnt(0)')
    for k in range(8):
        a(f'v_add_f32 v{vOF+16+k}, v{vOF+16+k}, v{vOF+24+k}')
    for k in range(8):
        a(f'v_add_f32 v{vOF+k}, v{vOF+k}, v{vOF+16+k}')
    for k in range(4):
        a(f'v_cvt_pk_bf16_f32 v{vOF+k}, v{vOF+2*k}, v{vOF+2*k+1}')
    a(f'buffer_store_dwordx4 {vr(vOF,4)}, v{vT0}, s[{SOUT}:{SOUT+3}], s{sTMP} offen')
    a('L3_done:')
    a('s_endpgm')
    return a.text(), kd(name, NV, 0), f'; @launch kernel={name} grid=(256,1,1) block=(512,1,1) lds=131072'

def build(**kw):
    ks = [gen_k1(), gen_k2(**kw), gen_k3()]
    hdr = ['; gated mix of MHA and MQA blocks: projections -> attention -> output projection']
    hdr += [k[2] for k in ks]
    out = '\n'.join(hdr) + '\n.amdgcn_target "amdgcn-amd-amdhsa--gfx950"\n.text\n'
    for t, d, _ in ks:
        out += t
    for t, d, _ in ks:
        out += d
    return out

if __name__ == '__main__':
    import sys
    open(sys.argv[1] if len(sys.argv) > 1 else 'gated_mix__mha_block__grouped_kv_mqa__prompt.s', 'w').write(build())
```

```python
from asmlib import *
import struct, sys

NAME = 'gated_mix__mha_block__grouped_kv_mqa__prompt_kernel'
WS_Q  = 0
WS_KV = 4 << 20
WS_G  = 0x880000
WS_O  = 9 << 20
WS_F  = 13 << 20
WS_ST = 14 << 20
WS_SIZE = 16 << 20
F1, F2, F3, F4 = WS_F + 4096, WS_F + 8192, WS_F + 12288, WS_F + 16384
CSCALE = 0.25 * 1.4426950408889634
LDS_BYTES = 163840
SPIN_MAX = 400000
def f2u(x): return struct.unpack('<I', struct.pack('<f', x))[0]

class Opt:
    stamp = False
    delta = 60.0
    exp = ''
    prof = 'main'
OPT = Opt()

pWQB, pWK, pWV, pWOB, pGATE, pOUT, pWOA, pWS, pX, pWQKV = 36, 38, 40, 42, 44, 46, 48, 50, 32, 34
SX, SWA, SWB, SKV, SG, SWS = 8, 12, 16, 20, 24, 28
SOUT = SX
sWV, sTB, sFB, sTAG, sIT, sHK, sHID, sPASS = 52, 53, 54, 55, 56, 57, 58, 59
sT0, sT1, sT2, sT3, sT4, sT5 = 60, 61, 62, 63, 64, 65
sSC = 67
sMASK = 68
sCC = 70
sTB3, sNB, sKH, sU, sSPIN, sOOFF = 74, 75, 76, 77, 78, 79
STAMP0 = 80
vLANE, vL16, vKA, vVA, vIDX, vG, vT0, vT1, vT2, vT3, vFL, vMX = 0, 1, 2, 3, 4, 5, 6, 7, 8, 9, 10, 12
negm = lambda q: 16 + 16*q
S = lambda b: 48 + 16*b
O = lambda q: 80 + 16*q
vOFB = 112
vACB = 144
vWF3 = 176
vACA = 16
vOFA = 48
NV = 192
Q = lambda q: 4*q
QN = lambda q: 8 + 4*q
KV = lambda s: 16 + 12*s
NA = 40

def srd(a, d, base, n):
    a(f's_mov_b32 s{d}, s{base}')
    a(f's_mov_b32 s{d+1}, s{base+1}')
    a(f's_mov_b32 s{d+2}, {n}')
    a(f's_mov_b32 s{d+3}, 0x00020000')
def S4(d): return f's[{d}:{d+3}]'

def swap23(a, dst, src, t):
    a(f'v_and_b32 {dst}, 0x13, {src}')
    a(f'v_and_b32 {t}, 4, {src}')
    a(f'v_lshl_or_b32 {dst}, {t}, 1, {dst}')
    a(f'v_and_b32 {t}, 8, {src}')
    a(f'v_lshrrev_b32 {t}, 1, {t}')
    a(f'v_or_b32 {dst}, {dst}, {t}')

PROFILES = {
 'main': {'start':0, 'b0':1, 'pend':2, 'b9':3, 'endB':4, 'startA':5, 'endA':6, 'e3':7, 'f4':8, 'end':9},
 'p': {'start':0, 'karg':1, 'iss0':2, 'iss2':3, 'b0pre':4, 'b0':5, 'b2':6, 'b4':7, 'b7':8, 'end':9, 'job':6, 'sig':7},
 'p2': {'start':0, 'b0':1, 'b7':2, 'b8':3, 'f1':4, 'kvi':5, 'pend':6, 'b9':7, 'loop0':8, 'end':9, 'gend':4},
 'mid': {'start':0, 'endB':1, 'chkB':2, 'e1B':3, 'e2preB':4, 'e2B':5, 'startA':6, 'loop1':7, 'h3':8, 'end':9},
 'tail': {'start':0, 'endA':1, 'e1A':2, 'e2A':3, 'e3pre':4, 'e3':5, 'e4':6, 'f4':7, 'e5':8, 'end':9},
}
def stamp(a, name, only=None):
    if not OPT.stamp: return
    i = PROFILES[OPT.prof].get(name)
    if i is None: return
    if only is None:
        a(f's_memtime s[{STAMP0+2*i}:{STAMP0+2*i+1}]')
    else:
        lab = a.label('L_st')
        a(f's_cmp_eq_u32 s{sPASS}, {only}')
        a(f's_cbranch_scc0 {lab}')
        a(f's_memtime s[{STAMP0+2*i}:{STAMP0+2*i+1}]')
        a(f'{lab}:')

def signal(a, soff):
    a(f'''
    v_mov_b32 v{vT0}, 0
    v_mov_b32 v{vT1}, s{sTAG}
    s_mov_b64 exec, 1
    buffer_store_dword v{vT1}, v{vT0}, {S4(SWS)}, s{soff} offen sc1
    s_mov_b64 exec, -1
    ''')

def flag_addr(a, nflags):
    a(f'''
    v_and_b32 v{vT0}, {nflags-1}, v{vLANE}
    v_lshrrev_b32 v{vT1}, 2, v{vT0}
    v_and_b32 v{vT0}, 3, v{vT0}
    v_lshlrev_b32 v{vT0}, 2, v{vT0}
    v_lshl_add_u32 v{vT0}, v{vT1}, 6, v{vT0}
    ''')
def poll_issue(a, nflags, soff):
    flag_addr(a, nflags)
    a(f'buffer_load_dword v{vFL}, v{vT0}, {S4(SWS)}, s{soff} offen sc1')
def poll_check(a, nflags, soff, wait='s_waitcnt vmcnt(0)'):
    lo, ok = a.label('L_spin'), a.label('L_ok')
    a(wait)
    a(f'v_cmp_ne_u32 vcc, s{sTAG}, v{vFL}')
    a(f's_cbranch_vccz {ok}')
    flag_addr(a, nflags)
    a(f's_mov_b32 s{sSPIN}, {SPIN_MAX}')
    a(f'''
    {lo}:
    buffer_load_dword v{vFL}, v{vT0}, {S4(SWS)}, s{soff} offen sc1
    s_waitcnt vmcnt(0)
    v_cmp_ne_u32 vcc, s{sTAG}, v{vFL}
    s_cbranch_vccz {ok}
    s_sleep 1
    s_sub_u32 s{sSPIN}, s{sSPIN}, 1
    s_cmp_lg_u32 s{sSPIN}, 0
    s_cbranch_scc1 {lo}
    {ok}:
    ''')

def dma_linear(a, so, n, srdreg, va, sc1=True):
    for i in range(n):
        if i % 4 == 0:
            if i: a(f's_add_u32 s{so}, s{so}, 4096')
            a(f's_mov_b32 m0, s{so}')
            a('s_nop 0')
        a(f'buffer_load_dwordx4 v{va}, {S4(srdreg)}, s{so} offen offset:{(i%4)*1024}{" sc1" if sc1 else ""} lds')
def dma_moved(a, sg, sl, n, srdreg, va):
    for i in range(n):
        if i % 4 == 0:
            if i:
                a(f's_add_u32 s{sg}, s{sg}, 4096')
                a(f's_add_u32 s{sl}, s{sl}, 4096')
            a(f's_mov_b32 m0, s{sl}')
            a('s_nop 0')
        a(f'buffer_load_dwordx4 v{va}, {S4(srdreg)}, s{sg} offen offset:{(i%4)*1024} sc1 lds')

def maxtree(a, dst, r):
    a(f'v_max3_f32 {dst}, v{r}, v{r+1}, v{r+2}')
    a(f'v_max3_f32 v{vT0}, v{r+3}, v{r+4}, v{r+5}')
    a(f'v_max3_f32 v{vT2}, v{r+6}, v{r+7}, v{r+8}')
    a(f'v_max3_f32 v{vT3}, v{r+9}, v{r+10}, v{r+11}')
    a(f'v_max3_f32 {dst}, {dst}, v{r+12}, v{r+13}')
    a(f'v_max3_f32 v{vT0}, v{vT0}, v{r+14}, v{r+15}')
    a(f'v_max3_f32 {dst}, {dst}, v{vT2}, v{vT3}')
    a(f'v_max_f32 {dst}, {dst}, v{vT0}')

def setm(a, margin):
    a(f'v_mov_b32 v{vT0}, v{vMX}')
    a(f'v_mov_b32 v{vT2}, v{vMX+1}')
    a.nop(1)
    a(f'v_permlane32_swap_b32 v{vT0}, v{vMX}')
    a(f'v_permlane32_swap_b32 v{vT2}, v{vMX+1}')
    a.nop(1)
    for q, t in ((0, vT0), (1, vT2)):
        a(f'v_max_f32 v{t}, v{t}, v{vMX+q}')
    for q, t in ((0, vT0), (1, vT2)):
        a(f'v_ceil_f32 v{t}, v{t}')
    for q, t in ((0, vT0), (1, vT2)):
        a(f'v_sub_f32 v{negm(q)}, {margin}, v{t}')
        a(f'v_sub_f32 v{negm(q)+1}, {margin}, v{t}')
    for q in range(2):
        for i in range(1, 8):
            a(f'v_pk_mov_b32 {vr(negm(q)+2*i,2)}, {vr(negm(q),2)}, {vr(negm(q),2)}')

def gen():
    a = Asm()
    a.lines.append(head(NAME))
    a(f'''
    s_cmp_ge_u32 s2, 256
    s_cbranch_scc1 L_done
    s_load_dwordx4 s[32:35], s[0:1], 0
    s_load_dwordx8 s[36:43], s[0:1], 32
    s_load_dwordx4 s[44:47], s[0:1], 64
    s_load_dwordx2 s[48:49], s[0:1], 16
    s_load_dwordx2 s[50:51], s[0:1], 88
    ''')
    if OPT.stamp:
        a('s_memrealtime s[100:101]')
        for i in range(10): a(f's_memtime s[{STAMP0+2*i}:{STAMP0+2*i+1}]')
    a(f'''
    v_lshrrev_b32 v{vT0}, 6, v0
    v_and_b32 v{vLANE}, 63, v0
    v_readfirstlane_b32 s{sWV}, v{vT0}
    v_lshlrev_b32 v{vL16}, 4, v{vLANE}
    s_and_b32 s{sT0}, s2, 7
    s_lshr_b32 s{sT1}, s2, 3
    s_lshr_b32 s{sTB}, s{sT0}, 1
    s_lshl_b32 s{sTB}, s{sTB}, 2
    s_and_b32 s{sT2}, s{sT1}, 3
    s_add_u32 s{sTB}, s{sTB}, s{sT2}
    s_and_b32 s{sFB}, s{sT0}, 1
    s_lshl_b32 s{sFB}, s{sFB}, 3
    s_lshr_b32 s{sNB}, s{sT1}, 2
    s_add_u32 s{sFB}, s{sFB}, s{sNB}
    s_lshl_b32 s{sTB3}, s{sT0}, 2
    s_add_u32 s{sTB3}, s{sTB3}, s{sT2}
    s_and_b32 s{sU}, s{sWV}, 3
    s_lshr_b32 s{sKH}, s{sWV}, 2
    s_mov_b32 s{sMASK}, 0xffff
    s_mov_b32 s{sMASK+1}, 0xffff
    s_mov_b32 s{sSC}, {hex(f2u(CSCALE))}
    s_waitcnt lgkmcnt(0)
    s_add_u32 s4, s{pWS}, {WS_F}
    s_addc_u32 s5, s{pWS+1}, 0
    s_load_dword s{sTAG}, s[4:5], 0
    ''')
    stamp(a, 'karg')
    srd(a, SX, pX, 2097152)
    srd(a, SWA, pWQKV, 512*3072)
    srd(a, SWB, pWQB, 512*1024)
    srd(a, SWS, pWS, WS_SIZE)
    srd(a, SG, pGATE, 1024)
    a(f'''
    s_bitcmp1_b32 s{sFB}, 0
    s_cselect_b32 s{SKV}, s{pWV}, s{pWK}
    s_cselect_b32 s{SKV+1}, s{pWV+1}, s{pWK+1}
    s_mov_b32 s{SKV+2}, 16384
    s_mov_b32 s{SKV+3}, 0x00020000
    s_cmp_lt_u32 s{sWV}, 2
    s_cbranch_scc1 L_g0
    s_cmp_lt_u32 s{sWV}, 4
    s_cbranch_scc1 L_g1
    s_cmp_eq_u32 s{sWV}, 4
    s_cbranch_scc1 L_w4
    s_cmp_eq_u32 s{sWV}, 5
    s_cbranch_scc1 L_w5
    s_cmp_eq_u32 s{sWV}, 6
    s_cbranch_scc1 L_w6
    ''')
    vA = 112
    a('L_w7:')
    a(f'''
    v_lshrrev_b32 v{vT0}, 2, v{vLANE}
    v_and_b32 v{vT1}, 3, v{vLANE}
    v_lshlrev_b32 v{vT1}, 4, v{vT1}
    v_lshl_add_u32 v{vA}, v{vT0}, 10, v{vT1}
    v_mul_u32_u24 v{vT0}, 3072, v{vT0}
    v_add_u32 v{vA+4}, v{vT0}, v{vT1}
    ''')
    for i in range(1, 4):
        a(f'v_add_u32 v{vA+i}, {15360*i}, v{vA}')
        a(f'v_add_u32 v{vA+4+i}, {48128*i}, v{vA+4}')
    a(f's_lshl_b32 s{sT0}, s{sFB}, 6')
    a(f's_mov_b32 s{sT1}, s{sT0}')
    def w_chunk(c):
        slot = (c & 3)*32768 + 16384
        a(f's_mov_b32 m0, {slot}')
        a(f's_add_u32 s{sT2}, s{sT1}, 1024')
        for i in range(4):
            a(f'buffer_load_dwordx4 v{vA+i}, {S4(SWB)}, s{sT0} offen offset:{i*1024} lds')
        for u, so in ((1, sT1), (2, sT2), (3, sT3)):
            a(f's_mov_b32 m0, {slot + u*4096}')
            a(f's_add_u32 s{sT3}, s{sT1}, 2048' if u == 1 else 's_nop 0')
            for i in range(4):
                a(f'buffer_load_dwordx4 v{vA+4+i}, {S4(SWA)}, s{so} offen offset:{i*1024} lds')
        a(f's_add_u32 s{sT0}, s{sT0}, {64*1024}')
        a(f's_add_u32 s{sT1}, s{sT1}, {64*3072}')
    def loader(chunk):
        chunk(0); stamp(a, 'iss0'); a('s_barrier'); chunk(1); chunk(2); stamp(a, 'iss2')
        for c in range(8):
            younger = min(c+2, 7) - c
            a(f's_waitcnt vmcnt({16*younger})')
            if c == 0: stamp(a, 'b0pre')
            a('s_barrier')
            stamp(a, f'b{c}')
            if c + 3 <= 7: chunk(c+3)
        a('s_branch L_kvb')
    loader(w_chunk)
    a('L_w6:')
    a(f'''
    v_lshrrev_b32 v{vT0}, 4, v{vLANE}
    v_and_b32 v{vT1}, 7, v{vLANE}
    v_xor_b32 v{vT1}, v{vT1}, v{vT0}
    v_lshlrev_b32 v{vT1}, 4, v{vT1}
    v_lshrrev_b32 v{vT2}, 3, v{vLANE}
    v_lshl_add_u32 v{vA}, v{vT2}, 10, v{vT1}
    v_xor_b32 v{vA+1}, 64, v{vA}
    v_add_u32 v{vA+1}, 7168, v{vA+1}
    v_add_u32 v{vA+2}, {2*7168}, v{vA}
    v_add_u32 v{vA+3}, {2*7168}, v{vA+1}
    s_lshl_b32 s{sT0}, s{sTB}, 17
    ''')
    def x_chunk(c):
        for g in range(4):
            a(f's_mov_b32 m0, {(c & 3)*32768 + g*4096}')
            a(f's_add_u32 s{sT1}, s{sT0}, {g*32768 + c*128}')
            for i in range(4):
                a(f'buffer_load_dwordx4 v{vA+i}, {S4(SX)}, s{sT1} offen offset:{i*1024} lds')
    loader(x_chunk)
    vE = 16
    def xs_addr():
        a(f'''
        v_and_b32 v{vT0}, 15, v{vLANE}
        v_lshrrev_b32 v{vT1}, 4, v{vLANE}
        v_xor_b32 v{vT1}, v{vT1}, v{vT0}
        v_lshlrev_b32 v{vT1}, 4, v{vT1}
        v_lshl_add_u32 v{vA}, v{vT0}, 10, v{vT1}
        v_add_u32 v{vA}, 131072, v{vA}
        v_xor_b32 v{vA+1}, 64, v{vA}
        v_xor_b32 v{vA+2}, 128, v{vA}
        v_xor_b32 v{vA+3}, 192, v{vA}
        ''')
    a('L_w4:')
    a(f'''
    s_lshr_b32 s{sT4}, s{sFB}, 1
    s_lshl_b32 s{sT0}, s{sTB}, 3
    s_add_u32 s{sT0}, s{sT0}, s{sT4}
    s_lshl_b32 s{sT0}, s{sT0}, 14
    ''')
    for r in range(16):
        if r % 4 == 0:
            a(f's_mov_b32 m0, {131072 + r*1024}')
            if r: a(f's_add_u32 s{sT0}, s{sT0}, 4096')
        a(f'v_xor_b32 v{vA+8+(r&3)}, {r*16}, v{vL16}')
        a(f'buffer_load_dwordx4 v{vA+8+(r&3)}, {S4(SX)}, s{sT0} offen offset:{(r&3)*1024} lds')
    stamp(a, 'iss0')
    a('s_barrier')
    xs_addr()
    a(f'''
    v_bfe_u32 v{vT0}, v{vLANE}, 2, 2
    v_lshrrev_b32 v{vT1}, 4, v{vLANE}
    v_lshl_add_u32 v{vT0}, v{vT1}, 3, v{vT0}      ; 8g + r
    v_and_b32 v{vT1}, 3, v{vLANE}
    v_lshlrev_b32 v{vT1}, 3, v{vT1}
    v_lshl_add_u32 v{vA+4}, v{vT0}, 5, v{vT1}
    v_add_u32 v{vA+4}, {131072+16384}, v{vA+4}
    v_and_b32 v{vT0}, 15, v{vLANE}
    s_and_b32 s{sT1}, s{sT4}, 1
    s_lshl_b32 s{sT2}, s{sT1}, 4
    v_add_u32 v{vT3}, s{sT2}, v{vT0}
    ''')
    swap23(a, f'v{vA+5}', f'v{vT3}', f'v{vT1}')
    a(f'''
    v_bfe_u32 v{vT1}, v{vLANE}, 4, 1
    v_lshl_add_u32 v{vA+5}, v{vT1}, 5, v{vA+5}
    v_lshl_add_u32 v{vA+6}, v{vT1}, 4, v{vT0}      ; h*16 + dh
    s_lshl_b32 s{sT2}, s{sT1}, 9
    s_add_u32 s{sT2}, s{sT2}, 1024
    v_lshlrev_b32 v{vA+6}, 4, v{vA+6}
    v_add_u32 v{vA+6}, s{sT2}, v{vA+6}
    v_lshlrev_b32 v{vA+5}, 4, v{vA+5}
    s_bitcmp1_b32 s{sFB}, 0
    s_cselect_b64 vcc, -1, 0
    v_lshrrev_b32 v{vT1}, 5, v{vLANE}
    v_cndmask_b32 v{vA+5}, v{vA+5}, v{vA+6}, vcc
    v_lshl_add_u32 v{vA+5}, v{vT1}, 3, v{vA+5}
    s_lshl_b32 s{sT0}, s{sTB}, 2
    s_lshr_b32 s{sT1}, s{sT4}, 1
    s_add_u32 s{sT0}, s{sT0}, s{sT1}
    s_lshl_b32 s{sT0}, s{sT0}, 11
    s_add_u32 s{sT0}, s{sT0}, {WS_KV + 32*131072}
    s_lshr_b32 s{sT1}, s2, 2
    s_lshl_b32 s{sT1}, s{sT1}, 6
    s_and_b32 s{sT2}, s2, 3
    s_lshl_b32 s{sT2}, s{sT2}, 2
    s_add_u32 s{sT1}, s{sT1}, s{sT2}
    s_add_u32 s{sT1}, s{sT1}, {F1}
    s_waitcnt vmcnt(0) lgkmcnt(0)
    s_add_u32 s{sTAG}, s{sTAG}, 1
    ''')
    stamp(a, 'b0pre')
    a('s_barrier')
    stamp(a, 'b0')
    def early_reads(b):
        for k in range(4):
            ks = 4*b + k
            base = vE + 32*(b & 1) + 8*k
            a(f'ds_read_b128 {vr(base,4)}, v{vA+k} offset:{b*256}')
            a(f'ds_read_b64_tr_b16 {vr(base+4,2)}, v{vA+4} offset:{ks*1024}')
            a(f'ds_read_b64_tr_b16 {vr(base+6,2)}, v{vA+4} offset:{ks*1024+128}')
    def early_job(kind):
        early_reads(0)
        for b in range(4):
            a('s_waitcnt lgkmcnt(0)')
            if b < 3: early_reads(b+1)
            for k in range(4):
                base = vE + 32*(b & 1) + 8*k
                X, W = vr(base, 4), vr(base+4, 4)
                A_, B_ = (W, X) if kind == 'k' else (X, W)
                a(f'v_mfma_f32_16x16x32_bf16 {vr(vMX,4)}, {A_}, {B_}, {"0" if b == 0 and k == 0 else vr(vMX,4)}')
        a('s_branch L_w4b')
    a(f's_bitcmp1_b32 s{sFB}, 0')
    a('s_cbranch_scc1 L_w4v')
    early_job('k')
    a('L_w4v:')
    early_job('v')
    a('L_w4b:')
    a.nop(8)
    stamp(a, 'job')
    a(f'''
    v_cvt_pk_bf16_f32 v{vMX}, v{vMX}, v{vMX+1}
    v_cvt_pk_bf16_f32 v{vMX+1}, v{vMX+2}, v{vMX+3}
    buffer_store_dwordx2 {vr(vMX,2)}, v{vA+5}, {S4(SWS)}, s{sT0} offen sc1
    s_barrier
    s_waitcnt vmcnt(0)
    ''')
    signal(a, sT1)
    stamp(a, 'sig')
    for c in range(2, 8):
        a('s_barrier')
        if c == 7: stamp(a, 'b7')
    a('s_branch L_kvb')
    a('L_w5:')
    a(f's_mov_b32 s{sT0}, 0')
    a(f's_mov_b32 s{sT1}, {131072+16384}')
    for i in range(16):
        if i % 4 == 0:
            if i:
                a(f's_add_u32 s{sT0}, s{sT0}, 4096')
                a(f's_add_u32 s{sT1}, s{sT1}, 4096')
            a(f's_mov_b32 m0, s{sT1}')
            a('s_nop 0')
        a(f'buffer_load_dwordx4 v{vL16}, {S4(SKV)}, s{sT0} offen offset:{(i%4)*1024} lds')
    vGF = 16
    a(f'''
    s_barrier
    s_bitcmp1_b32 s{sFB}, 0
    s_cbranch_scc1 L_w5n
    v_lshrrev_b32 v{vT0}, 4, v{vLANE}
    v_lshlrev_b32 v{vT0}, 4, v{vT0}
    ''')
    for ks in range(16):
        a(f'buffer_load_dwordx4 {vr(vGF+4*ks,4)}, v{vT0}, {S4(SG)}, 0 offen offset:{ks*64}')
    xs_addr()
    a(f'''
    v_and_b32 v{vA+4}, 15, v{vLANE}
    v_lshlrev_b32 v{vA+4}, 2, v{vA+4}
    s_lshl_b32 s{sT0}, s{sTB}, 3
    s_lshr_b32 s{sT1}, s{sFB}, 1
    s_add_u32 s{sT0}, s{sT0}, s{sT1}
    s_lshl_b32 s{sT0}, s{sT0}, 6
    s_add_u32 s{sT0}, s{sT0}, {WS_G}
    ''')
    stamp(a, 'iss2')
    a('s_waitcnt vmcnt(0)')
    stamp(a, 'b0pre')
    a('s_barrier')
    stamp(a, 'b0')
    vXG = 80
    for b in range(2):
        for k in range(8):
            ks = 8*b + k
            a(f'ds_read_b128 {vr(vXG+4*k,4)}, v{vA+(ks&3)} offset:{(ks>>2)*256}')
        for k in range(8):
            ks = 8*b + k
            a(f's_waitcnt lgkmcnt({7-k})')
            a(f'v_mfma_f32_16x16x32_bf16 {vr(vMX,4)}, {vr(vGF+4*ks,4)}, {vr(vXG+4*k,4)}, {"0" if ks == 0 else vr(vMX,4)}')
    a.nop(8)
    a(f'''
    v_mul_f32 v{vMX}, {hex(f2u(-1.4426950408889634))}, v{vMX}
    v_exp_f32 v{vMX}, v{vMX}
    s_nop 0
    v_add_f32 v{vMX}, 1.0, v{vMX}
    v_rcp_f32 v{vMX}, v{vMX}
    s_nop 0
    buffer_store_dword v{vMX}, v{vA+4}, {S4(SWS)}, s{sT0} offen sc1
    s_branch L_w5b
    L_w5n:
    s_waitcnt vmcnt(0)
    s_barrier
    L_w5b:
    ''')
    stamp(a, 'job')
    for c in range(1, 8):
        a('s_barrier')
        if c == 7: stamp(a, 'b7')
    a('L_kvb:')
    a(f'''
    s_waitcnt lgkmcnt(0)
    s_cmp_eq_u32 s{sWV}, 4
    s_cbranch_scc1 L_kvb_tag
    s_add_u32 s{sTAG}, s{sTAG}, 1
    L_kvb_tag:
    v_lshlrev_b32 v{vT0}, 6, v{vLANE}
    s_mov_b32 s{sT0}, {F1}
    s_add_u32 s{SKV}, s{pWS}, {WS_KV + 32*131072}
    s_addc_u32 s{SKV+1}, s{pWS+1}, 0
    s_mov_b32 s{SKV+2}, 131072
    s_mov_b32 s{SKV+3}, 0x00020000
    s_mov_b32 s{sSPIN}, {SPIN_MAX}
    L_kvb_spin:
    buffer_load_dwordx4 {vr(vMX,4)}, v{vT0}, {S4(SWS)}, s{sT0} offen sc1
    s_waitcnt vmcnt(0)
    v_cmp_ne_u32 vcc, s{sTAG}, v{vMX}
    v_cmp_ne_u32 s[{sCC}:{sCC+1}], s{sTAG}, v{vMX+1}
    s_or_b64 vcc, vcc, s[{sCC}:{sCC+1}]
    v_cmp_ne_u32 s[{sCC}:{sCC+1}], s{sTAG}, v{vMX+2}
    v_cmp_ne_u32 s[{sCC+2}:{sCC+3}], s{sTAG}, v{vMX+3}
    s_or_b64 vcc, vcc, s[{sCC}:{sCC+1}]
    s_or_b64 vcc, vcc, s[{sCC+2}:{sCC+3}]
    s_cbranch_vccz L_kvb_go
    s_sleep 1
    s_sub_u32 s{sSPIN}, s{sSPIN}, 1
    s_cmp_lg_u32 s{sSPIN}, 0
    s_cbranch_scc1 L_kvb_spin
    L_kvb_go:
    s_lshl_b32 s{sT0}, s{sU}, 12
    ''')
    stamp(a, 'f1')
    dma_linear(a, sT0, 4, SKV, vL16)
    a(f's_add_u32 s{sT0}, s{sT0}, 65536')
    dma_linear(a, sT0, 4, SKV, vL16)
    a('s_barrier')
    stamp(a, 'b8')
    a('s_waitcnt vmcnt(0)')
    a('s_barrier')
    stamp(a, 'b9')
    a(f's_mul_i32 s{sT0}, s{sU}, {12*1024}')
    a(f's_add_u32 s{sT0}, s{sT0}, 16384')
    dma_linear(a, sT0, 12, SKV, vL16)
    a(f's_mul_i32 s{sT0}, s{sU}, {12*1024}')
    a(f's_add_u32 s{sT0}, s{sT0}, {65536+16384}')
    dma_linear(a, sT0, 12, SKV, vL16)
    stamp(a, 'kvi')
    a('s_branch L_p_end')
    vXR, vWR, vXF, vWF, vACC = 112, 120, 80, 96, 16
    def reads(c, ks, sp):
        buf = (c*4 + ks) & 1
        hs = (c & 3) >> 1
        so = (c & 1) * 32768
        out = []
        for j in range(2):
            out.append(f'ds_read_b128 {vr(vXF+8*buf+4*j,4)}, v{vXR+4*hs+ks} offset:{so+4096*j}')
        for u in range(2):
            for j2 in range(2):
                out.append(f'ds_read_b64_tr_b16 {vr(vWF+8*buf+4*u+2*j2,2)}, v{vWR+hs} offset:{so+16384+(2*sp+u)*4096+ks*1024+j2*256}')
        return out
    def mfmas(c, ks, sp):
        buf = (c*4 + ks) & 1
        first = (c == 0 and ks == 0)
        out = []
        for j in range(2):
            for u in range(2):
                d = vACC + 32*j + 16*u
                X = vr(vXF+8*buf+4*j, 4); W = vr(vWF+8*buf+4*u, 4)
                A_, B_ = (X, W) if (sp == 1 and u == 1) else (W, X)
                out.append(f'v_mfma_f32_32x32x16_bf16 {vr(d,16)}, {A_}, {B_}, {"0" if first else vr(d,16)}')
        return out
    def interleave(m, r):
        out = []; r = list(r)
        for x in m:
            out.append(x)
            for _ in range(2):
                if r: out.append(r.pop(0))
        return out + r
    def gemm(sp):
        a(f'L_g{sp}:')
        a(f'''
        v_and_b32 v{vT0}, 31, v{vLANE}
        v_lshrrev_b32 v{vT1}, 5, v{vLANE}
        v_bfe_u32 v{vT2}, v{vLANE}, 1, 3
        v_xor_b32 v{vT1}, v{vT1}, v{vT2}
        v_lshlrev_b32 v{vT1}, 4, v{vT1}
        v_lshl_add_u32 v{vT0}, v{vT0}, 7, v{vT1}
        s_and_b32 s{sT0}, s{sWV}, 1
        s_lshl_b32 s{sT1}, s{sT0}, 13
        v_add_u32 v{vXR}, s{sT1}, v{vT0}
        ''')
        for ks in range(1, 4):
            a(f'v_xor_b32 v{vXR+ks}, {ks*32}, v{vXR}')
        for i in range(4):
            a(f'v_add_u32 v{vXR+4+i}, 65536, v{vXR+i}')
        a(f'''
        v_bfe_u32 v{vT0}, v{vLANE}, 2, 2
        v_lshrrev_b32 v{vT1}, 5, v{vLANE}
        v_lshl_add_u32 v{vT0}, v{vT1}, 3, v{vT0}
        v_lshlrev_b32 v{vT0}, 6, v{vT0}
        v_bfe_u32 v{vT1}, v{vLANE}, 4, 1
        v_lshl_add_u32 v{vT0}, v{vT1}, 5, v{vT0}
        v_and_b32 v{vT1}, 3, v{vLANE}
        v_lshl_add_u32 v{vWR}, v{vT1}, 3, v{vT0}
        v_add_u32 v{vWR+1}, 65536, v{vWR}
        s_lshl_b32 s{sT1}, s{sTB}, 2
        s_lshl_b32 s{sT2}, s{sT0}, 1
        s_add_u32 s{sT1}, s{sT1}, s{sT2}
        ''')
        if sp == 0:
            a(f'''
            s_lshl_b32 s{sT2}, s{sFB}, 7
            s_add_u32 s{sT2}, s{sT2}, s{sT1}
            s_lshl_b32 s{sT2}, s{sT2}, 10
            s_lshl_b32 s{sT3}, s{sT0}, 12
            s_add_u32 s{sT3}, s{sT3}, 131072
            v_add_u32 v{vWR+2}, s{sT3}, v{vL16}
            ''')
        else:
            a(f'v_and_b32 v{vT3}, 31, v{vLANE}')
            swap23(a, f'v{vWR+2}', f'v{vT3}', f'v{vT1}')
            a(f'''
            v_and_b32 v{vT0}, 32, v{vLANE}
            v_add_u32 v{vWR+2}, v{vWR+2}, v{vT0}
            v_lshlrev_b32 v{vWR+2}, 4, v{vWR+2}
            v_and_b32 v{vT0}, 15, v{vLANE}
            v_lshrrev_b32 v{vT1}, 5, v{vLANE}
            v_lshl_add_u32 v{vT1}, v{vT1}, 4, v{vT0}
            v_lshlrev_b32 v{vT1}, 4, v{vT1}
            v_bfe_u32 v{vT0}, v{vLANE}, 4, 1
            v_lshl_add_u32 v{vWR+3}, v{vT0}, 17, v{vT1}
            s_lshl_b32 s{sT2}, s{sFB}, 7
            s_add_u32 s{sT2}, s{sT2}, s{sT1}
            s_lshl_b32 s{sT2}, s{sT2}, 11
            s_add_u32 s{sT2}, s{sT2}, {WS_KV}
            ''')
        a('s_barrier')
        a('s_waitcnt lgkmcnt(0)')
        a(f's_add_u32 s{sTAG}, s{sTAG}, 1')
        stamp(a, 'b0pre')
        a('s_barrier')
        stamp(a, 'b0')
        for x in reads(0, 0, sp): a(x)
        for c in range(8):
            for ks in range(3):
                rd = reads(c, ks+1, sp)
                for x in rd[:2]: a(x)
                a('s_waitcnt lgkmcnt(2)')
                for x in interleave(mfmas(c, ks, sp), rd[2:]): a(x)
            a('s_waitcnt lgkmcnt(0)')
            a('s_barrier')
            stamp(a, f'b{c+1}')
            m = mfmas(c, 3, sp)
            if c < 7:
                for x in interleave(m, reads(c+1, 0, sp)): a(x)
            else:
                for x in m: a(x)
        a.nop(10)
        stamp(a, 'gend')
        if sp == 0:
            for u in range(2):
                for j in range(2):
                    d = vACC + 32*j + 16*u
                    for i in range(8):
                        a(f'v_pk_mul_f32 {vr(d+2*i,2)}, {vr(d+2*i,2)}, s[{sSC-1}:{sSC}] op_sel:[0,1] op_sel_hi:[1,1]')
                    for i in range(8):
                        a(f'v_cvt_pk_bf16_f32 v{d+i}, v{d+2*i}, v{d+2*i+1}')
                    if u == 0:
                        a(f'ds_write_b128 v{vWR+2}, {vr(d,4)} offset:{j*2048}')
                        a(f'ds_write_b128 v{vWR+2}, {vr(d+4,4)} offset:{j*2048+1024}')
                    else:
                        a(f'buffer_store_dwordx4 {vr(d,4)}, v{vL16}, {S4(SWS)}, s{sT2} offen offset:{j*1024} sc1')
                        a(f's_add_u32 s{sT3}, s{sT2}, 65536')
                        a(f'buffer_store_dwordx4 {vr(d+4,4)}, v{vL16}, {S4(SWS)}, s{sT3} offen offset:{j*1024} sc1')
                if u == 0:
                    a('s_waitcnt lgkmcnt(0)')
                    a('s_barrier')
                    stamp(a, 'b9')
        else:
            a('s_barrier')
            stamp(a, 'b9')
            a(f's_add_u32 s{sT3}, s{sT2}, 131072')
            for j in range(2):
                for u in range(2):
                    d = vACC + 32*j + 16*u
                    for i in range(8):
                        a(f'v_cvt_pk_bf16_f32 v{d+i}, v{d+2*i}, v{d+2*i+1}')
                    if u == 0:
                        a(f'buffer_store_dwordx4 {vr(d,4)}, v{vWR+2}, {S4(SWS)}, s{sT2} offen offset:{j*2048} sc1')
                        a(f'buffer_store_dwordx4 {vr(d+4,4)}, v{vWR+2}, {S4(SWS)}, s{sT3} offen offset:{j*2048} sc1')
                    else:
                        a(f'buffer_store_dwordx4 {vr(d,4)}, v{vWR+3}, {S4(SWS)}, s{sT2} offen offset:{j*2048+1024} sc1')
                        a(f'buffer_store_dwordx4 {vr(d+4,4)}, v{vWR+3}, {S4(SWS)}, s{sT2} offen offset:{j*2048+1536} sc1')
        a(f'''
        s_add_u32 s{SKV}, s{pWS}, {WS_KV + 32*131072}
        s_addc_u32 s{SKV+1}, s{pWS+1}, 0
        s_mov_b32 s{SKV+2}, 131072
        s_mov_b32 s{SKV+3}, 0x00020000
        ''')
    gemm(1)
    a('s_branch L_p_end')
    gemm(0)
    a('L_p_end:')
    stamp(a, 'pend')
    a(f'''
    s_lshl_b32 s{sT0}, s{sKH}, 16
    v_add_u32 v{vKA}, s{sT0}, v{vL16}
    v_and_b32 v{vT0}, 15, v{vLANE}
    v_lshrrev_b32 v{vT2}, 5, v{vLANE}
    v_lshl_add_u32 v{vT0}, v{vT2}, 4, v{vT0}
    v_lshlrev_b32 v{vT0}, 4, v{vT0}
    v_add_u32 v{vVA}, s{sT0}, v{vT0}
    v_mov_b32 v{vIDX}, 0xdddddddd
    v_and_b32 v{vT0}, 27, v{vLANE}
    v_cmp_eq_u32 vcc, 16, v{vT0}
    v_mov_b32 v{vT2}, 0x3f803f80
    s_lshl_b32 s{sT0}, s{sU}, 11
    s_add_u32 s{sT0}, s{sT0}, 131072
    v_cndmask_b32 v{vT2}, 0, v{vT2}, vcc
    v_add_u32 v{vT1}, s{sT0}, v{vL16}
    s_mov_b32 s{sPASS}, 0
    s_mov_b32 s{sHK}, 3
    s_mov_b32 s{sHID}, 0
    ''')
    for s in range(2):
        for i in range(8):
            a(f'v_accvgpr_write_b32 a{KV(s)+4+i}, v{vT2}')
    a(f'ds_read_b128 {ar(Q(0),4)}, v{vT1}')
    a(f'ds_read_b128 {ar(Q(1),4)}, v{vT1} offset:1024')
    a('L_pass:')
    a(f'''
    ds_read_b128 {ar(KV(0),4)}, v{vKA}
    s_mov_b64 exec, s[{sMASK}:{sMASK+1}]
    ds_read_b128 {ar(KV(0)+4,4)}, v{vVA} offset:1024
    ds_read_b128 {ar(KV(0)+8,4)}, v{vVA} offset:1536
    s_mov_b64 exec, -1
    s_mov_b32 s{sIT}, 0
    s_waitcnt lgkmcnt(2)
    ''')
    for q in range(2):
        a(f'v_mfma_f32_32x32x16_bf16 {vr(negm(q),16)}, {ar(KV(0),4)}, {ar(Q(q),4)}, 0')
    for q in range(2):
        for i in range(8):
            a(f'v_pk_mov_b32 {vr(O(q)+2*i,2)}, 0, 0')
    for i in range(4):
        a(f'v_pk_mov_b32 {vr(S(1)+8+2*i,2)}, 0, 0')
    for q in range(2):
        maxtree(a, f'v{vMX+q}', negm(q))
    setm(a, hex(f2u(-OPT.delta)))
    a('s_waitcnt lgkmcnt(0)')
    a(f'v_mfma_f32_32x32x16_bf16 {vr(S(0),16)}, {ar(KV(0),4)}, {ar(Q(0),4)}, {vr(negm(0),16)}')
    a.nop(12)
    stamp(a, 'loop0', 0); stamp(a, 'loop1', 1)
    a('.p2align 6')
    a('L_loop:')
    steps = [(t, q) for t in range(2) for q in range(2)]
    n = len(steps)
    for i, (t, q) in enumerate(steps):
        b = i % 2
        tp, qp = steps[(i-1) % n]; tn, qn = steps[(i+1) % n]
        e = [f'v_exp_f32 v{S(b)+j}, v{S(b)+j}' for j in range(16)]
        smf2 = f'v_smfmac_f32_32x32x32_bf16 {vr(O(qp),16)}, {ar(KV(tp)+8,4)}, {vr(S(b^1)+8,8)}, v{vIDX}'
        qk = f'v_mfma_f32_32x32x16_bf16 {vr(S(b^1),16)}, {ar(KV(tn),4)}, {ar(Q(qn),4)}, {vr(negm(qn),16)}'
        smf1 = f'v_smfmac_f32_32x32x32_bf16 {vr(O(q),16)}, {ar(KV(t)+4,4)}, {vr(S(b),8)}, v{vIDX}'
        for x in e[0:2]: a(x)
        a(smf2)
        if q == 0:
            s = (t+1) % 2
            off = (t+1)*2048
            if t == 1:
                a(f's_cmp_eq_u32 s{sIT}, s{sHK}')
                a('s_cbranch_scc1 L_hook')
                a('L_back:')
            a(f'ds_read_b128 {ar(KV(s),4)}, v{vKA} offset:{off}')
            a(f's_mov_b64 exec, s[{sMASK}:{sMASK+1}]')
            a(f'ds_read_b128 {ar(KV(s)+4,4)}, v{vVA} offset:{off+1024}')
            a(f'ds_read_b128 {ar(KV(s)+8,4)}, v{vVA} offset:{off+1536}')
            a('s_mov_b64 exec, -1')
        for x in e[2:5]: a(x)
        if q == 1: a('s_waitcnt lgkmcnt(0)')
        a(qk)
        for x in e[5:10]: a(x)
        a(smf1)
        for x in e[10:16]: a(x)
        if i == n-1:
            a(f'v_add_u32 v{vKA}, 4096, v{vKA}')
            a(f'v_add_u32 v{vVA}, 4096, v{vVA}')
    a(f'''
    s_add_u32 s{sIT}, s{sIT}, 1
    s_cmp_lt_u32 s{sIT}, 16
    s_cbranch_scc1 L_loop
    v_smfmac_f32_32x32x32_bf16 {vr(O(1),16)}, {ar(KV(1)+8,4)}, {vr(S(1)+8,8)}, v{vIDX}
    s_mov_b32 s{sT0}, {hex(f2u(2.0**100))}
    ''')
    stamp(a, 'endB', 0); stamp(a, 'endA', 1)
    a(f'v_fma_f32 v{vMX}, v{O(0)}, 0, v{O(0)+8}')
    for i in range(1, 8):
        a(f'v_fma_f32 v{vMX}, v{O(0)+i}, 0, v{vMX}')
    a.nop(4)
    a(f'v_fma_f32 v{vMX+1}, v{O(1)}, 0, v{O(1)+8}')
    for i in range(1, 8):
        a(f'v_fma_f32 v{vMX+1}, v{O(1)+i}, 0, v{vMX+1}')
    a(f'''
    v_cmp_nle_f32 vcc, v{vMX}, s{sT0}
    v_cmp_nle_f32 s[{sCC}:{sCC+1}], v{vMX+1}, s{sT0}
    s_or_b64 vcc, vcc, s[{sCC}:{sCC+1}]
    s_cbranch_vccnz L_fallback
    L_fin:
    s_waitcnt vmcnt(0) lgkmcnt(0)
    ''')
    stamp(a, 'chkB', 0)
    a('s_barrier')
    stamp(a, 'e1B', 0); stamp(a, 'e1A', 1)
    a(f'''
    s_cmp_eq_u32 s{sPASS}, 0
    s_cselect_b32 s{sT1}, 3, 2
    s_lshl_b32 s{sT1}, s{sT1}, 15           ; 96K (B) / 64K (A)
    s_mul_i32 s{sT0}, s{sWV}, 2560
    s_add_u32 s{sT0}, s{sT0}, s{sT1}
    v_add_u32 v{vKA}, s{sT0}, v{vL16}
    v_lshrrev_b32 v{vT3}, 1, v{vL16}
    v_add_u32 v{vVA}, s{sT0}, v{vT3}
    s_cmp_eq_u32 s{sKH}, 0
    s_cbranch_scc1 L_send1
    v_mov_b32 v{O(0)+9}, v{negm(0)}
    ds_write_b128 v{vKA}, {vr(O(0),4)}
    ds_write_b128 v{vKA}, {vr(O(0)+4,4)} offset:1024
    ds_write_b64 v{vVA}, {vr(O(0)+8,2)} offset:2048
    ''')
    for i in range(0, 10, 2):
        a(f'v_pk_mov_b32 {vr(O(0)+i,2)}, {vr(O(1)+i,2)}, {vr(O(1)+i,2)} op_sel:[0,1]')
    a(f'''
    v_mov_b32 v{negm(0)}, v{negm(1)}
    s_branch L_sent
    L_send1:
    v_mov_b32 v{O(1)+9}, v{negm(1)}
    ds_write_b128 v{vKA}, {vr(O(1),4)}
    ds_write_b128 v{vKA}, {vr(O(1)+4,4)} offset:1024
    ds_write_b64 v{vVA}, {vr(O(1)+8,2)} offset:2048
    L_sent:
    s_xor_b32 s{sT0}, s{sWV}, 4
    s_mul_i32 s{sT0}, s{sT0}, 2560
    s_add_u32 s{sT0}, s{sT0}, s{sT1}
    v_add_u32 v{vKA}, s{sT0}, v{vL16}
    v_add_u32 v{vVA}, s{sT0}, v{vT3}
    s_cmp_eq_u32 s{sPASS}, 0
    s_cbranch_scc0 L_fin_a
    ''')
    a(f'''
    s_lshl_b32 s{sOOFF}, s{sTB}, 2
    s_add_u32 s{sOOFF}, s{sOOFF}, s{sU}
    s_lshl_b32 s{sOOFF}, s{sOOFF}, 6
    s_lshl_b32 s{sT0}, s{sFB}, 1
    s_add_u32 s{sT0}, s{sT0}, s{sKH}
    s_add_u32 s{sT0}, s{sT0}, 32
    s_branch L_fin_c
    L_fin_a:
    s_lshr_b32 s{sOOFF}, s{sTB}, 1
    s_lshl_b32 s{sOOFF}, s{sOOFF}, 2
    s_add_u32 s{sOOFF}, s{sOOFF}, s{sU}
    s_lshl_b32 s{sOOFF}, s{sOOFF}, 1
    s_add_u32 s{sOOFF}, s{sOOFF}, s{sKH}
    s_lshl_b32 s{sOOFF}, s{sOOFF}, 6
    s_lshl_b32 s{sT0}, s{sFB}, 1
    s_and_b32 s{sT1}, s{sTB}, 1
    s_add_u32 s{sT0}, s{sT0}, s{sT1}
    L_fin_c:
    s_add_u32 s{sOOFF}, s{sOOFF}, s{sT0}
    s_lshl_b32 s{sOOFF}, s{sOOFF}, 10
    s_add_u32 s{sOOFF}, s{sOOFF}, {WS_O}
    s_waitcnt lgkmcnt(0)
    ''')
    stamp(a, 'e2preB', 0)
    a('s_barrier')
    stamp(a, 'e2B', 0); stamp(a, 'e2A', 1)
    p = S(0); o = O(0)
    a(f'''
    ds_read_b64 {vr(p+8,2)}, v{vVA} offset:2048
    ds_read_b128 {vr(p,4)}, v{vKA}
    ds_read_b128 {vr(p+4,4)}, v{vKA} offset:1024
    s_waitcnt lgkmcnt(2)
    v_min_f32 v{vT0}, v{negm(0)}, v{p+9}
    v_sub_f32 v{vT2}, v{vT0}, v{negm(0)}
    v_sub_f32 v{vT3}, v{vT0}, v{p+9}
    v_max_f32 v{vT2}, 0xc3960000, v{vT2}
    v_max_f32 v{vT3}, 0xc3960000, v{vT3}
    v_cvt_i32_f32 v{vT2}, v{vT2}
    v_cvt_i32_f32 v{vT3}, v{vT3}
    v_ldexp_f32 v{o+8}, v{o+8}, v{vT2}
    v_ldexp_f32 v{p+8}, v{p+8}, v{vT3}
    v_add_f32 v{vT0}, v{o+8}, v{p+8}
    v_rcp_f32 v{vT0}, v{vT0}
    s_nop 0
    v_ldexp_f32 v{vT2}, v{vT0}, v{vT2}
    v_ldexp_f32 v{vT3}, v{vT0}, v{vT3}
    ''')
    for k in range(8):
        a(f'v_mul_f32 v{o+k}, v{o+k}, v{vT2}')
    a('s_waitcnt lgkmcnt(0)')
    for k in range(8):
        a(f'v_fma_f32 v{o+k}, v{p+k}, v{vT3}, v{o+k}')
    for k in range(4):
        a(f'v_cvt_pk_bf16_f32 v{o+k}, v{o+2*k}, v{o+2*k+1}')
    a(f'''
    buffer_store_dwordx4 {vr(o,4)}, v{vL16}, {S4(SWS)}, s{sOOFF} offen sc1
    s_cmp_eq_u32 s{sPASS}, 0
    s_cbranch_scc0 L_tail
    ''')
    a(f'''
    s_cmp_eq_u32 s{sKH}, 0
    s_cbranch_scc1 L_noam
    s_mul_i32 s{sT1}, s{sU}, {12*1024}
    s_add_u32 s{sT0}, s{sT1}, 16384
    ''')
    dma_moved(a, sT0, sT1, 12, SKV, vL16)
    a(f'''
    s_mul_i32 s{sT1}, s{sU}, {12*1024}
    s_add_u32 s{sT0}, s{sT1}, {65536+16384}
    s_add_u32 s{sT1}, s{sT1}, {48*1024}
    ''')
    dma_moved(a, sT0, sT1, 12, SKV, vL16)
    a('L_noam:')
    for i in range(8):
        a(f'v_accvgpr_mov_b32 a{Q(0)+i}, a{QN(0)+i}')
    a(f'''
    s_lshl_b32 s{sT0}, s{sKH}, 14
    s_add_u32 s{sT0}, s{sT0}, 131072
    v_add_u32 v{vKA}, s{sT0}, v{vL16}
    v_and_b32 v{vT0}, 15, v{vLANE}
    v_lshrrev_b32 v{vT2}, 5, v{vLANE}
    v_lshl_add_u32 v{vT0}, v{vT2}, 4, v{vT0}
    v_lshlrev_b32 v{vT0}, 4, v{vT0}
    v_add_u32 v{vVA}, s{sT0}, v{vT0}
    s_mov_b32 s{sPASS}, 1
    s_mov_b32 s{sHK}, 3
    s_mov_b32 s{sHID}, 3
    ''')
    stamp(a, 'startA')
    a('s_branch L_pass')
    a('L_hook:')
    a(f'''
    s_cmp_eq_u32 s{sHID}, 1
    s_cbranch_scc1 L_hook1
    s_cmp_eq_u32 s{sHID}, 2
    s_cbranch_scc1 L_hook2
    s_cmp_eq_u32 s{sHID}, 3
    s_cbranch_scc1 L_hook3
    s_cmp_eq_u32 s{sHID}, 4
    s_cbranch_scc1 L_hook4
    s_cmp_eq_u32 s{sHID}, 5
    s_cbranch_scc1 L_hook5
    ''')
    a(f'''
    s_waitcnt vmcnt(0)
    s_barrier
    s_mov_b32 s{sHK}, 6
    s_mov_b32 s{sHID}, 1
    s_cmp_lg_u32 s{sWV}, 0
    s_cbranch_scc1 L_back
    s_lshl_b32 s{sT0}, s{sFB}, 8
    s_lshr_b32 s{sT1}, s{sTB}, 2
    s_lshl_b32 s{sT1}, s{sT1}, 6
    s_add_u32 s{sT0}, s{sT0}, s{sT1}
    s_and_b32 s{sT1}, s{sTB}, 3
    s_lshl_b32 s{sT1}, s{sT1}, 2
    s_add_u32 s{sT0}, s{sT0}, s{sT1}
    s_add_u32 s{sT0}, s{sT0}, {F2}
    ''')
    signal(a, sT0)
    a('s_branch L_back')
    a('L_hook1:')
    a(f's_lshl_b32 s{sT0}, s{sFB}, 8')
    a(f's_add_u32 s{sT0}, s{sT0}, {F2}')
    poll_issue(a, 16, sT0)
    a(f'''
    s_mov_b32 s{sHK}, 7
    s_mov_b32 s{sHID}, 2
    s_branch L_back
    L_hook2:
    s_lshl_b32 s{sT0}, s{sFB}, 8
    s_add_u32 s{sT0}, s{sT0}, {F2}
    ''')
    poll_check(a, 16, sT0)
    a(f'''
    s_lshl_b32 s{sT0}, s{sFB}, 1
    s_and_b32 s{sT1}, s{sTB}, 1
    s_add_u32 s{sT0}, s{sT0}, s{sT1}
    s_lshl_b32 s{sT1}, s{sT0}, 17
    s_add_u32 s{sT1}, s{sT1}, {WS_KV}
    s_add_u32 s{SKV}, s{pWS}, s{sT1}
    s_addc_u32 s{SKV+1}, s{pWS+1}, 0
    s_mov_b32 s{SKV+2}, 131072
    s_mov_b32 s{SKV+3}, 0x00020000
    s_lshl_b32 s{sT0}, s{sT0}, 6
    s_lshr_b32 s{sT1}, s{sTB}, 1
    s_lshl_b32 s{sT1}, s{sT1}, 3
    s_add_u32 s{sT0}, s{sT0}, s{sT1}
    s_lshl_b32 s{sT1}, s{sU}, 1
    s_add_u32 s{sT0}, s{sT0}, s{sT1}
    s_lshl_b32 s{sT0}, s{sT0}, 10
    buffer_load_dwordx4 {ar(QN(0),4)}, v{vL16}, {S4(SWS)}, s{sT0} offen sc1
    buffer_load_dwordx4 {ar(QN(1),4)}, v{vL16}, {S4(SWS)}, s{sT0} offen offset:1024 sc1
    s_lshl_b32 s{sT0}, s{sKH}, 16
    s_lshl_b32 s{sT2}, s{sU}, 12
    s_add_u32 s{sT0}, s{sT0}, s{sT2}
    s_lshl_b32 s{sT1}, s{sWV}, 12
    s_add_u32 s{sT1}, s{sT1}, 131072
    ''')
    dma_moved(a, sT0, sT1, 4, SKV, vL16)
    a(f'''
    s_mov_b32 s{sHK}, -1
    s_branch L_back
    ''')
    def wo_dma(srdreg, ldsbase):
        a(f'''
        v_lshrrev_b32 v{vT0}, 2, v{vLANE}
        v_lshrrev_b32 v{vT1}, 4, v{vLANE}
        v_xor_b32 v{vT0}, v{vT0}, v{vT1}
        v_and_b32 v{vT0}, 1, v{vT0}
        v_lshlrev_b32 v{vT0}, 6, v{vT0}
        v_and_b32 v{vT1}, 3, v{vLANE}
        v_lshl_add_u32 v{vT0}, v{vT1}, 4, v{vT0}
        v_lshrrev_b32 v{vT1}, 3, v{vLANE}
        v_lshl_add_u32 v{vT0}, v{vT1}, 10, v{vT0}
        v_add_u32 v{vT1}, 7168, v{vT0}
        v_add_u32 v{vT2}, {2*7168}, v{vT0}
        v_add_u32 v{vT3}, {3*7168}, v{vT0}
        s_lshl_b32 s{sT0}, s{sWV}, 16
        s_lshl_b32 s{sT1}, s{sNB}, 7
        s_add_u32 s{sT0}, s{sT0}, s{sT1}
        s_lshl_b32 s{sT1}, s{sWV}, 13
        s_add_u32 s{sT1}, s{sT1}, {ldsbase}
        ''')
        for g in range(2):
            if g:
                a(f's_add_u32 s{sT0}, s{sT0}, 32768')
                a(f's_add_u32 s{sT1}, s{sT1}, 4096')
            a(f's_mov_b32 m0, s{sT1}')
            a('s_nop 0')
            for i in range(4):
                a(f'buffer_load_dwordx4 v{vT0+i}, {S4(srdreg)}, s{sT0} offen offset:{i*1024} lds')
    def switch_addr():
        a(f'''
        s_mul_i32 s{sT0}, s{sKH}, {48*1024}
        s_sub_u32 s{sT0}, s{sT0}, 4096
        v_add_u32 v{vKA}, s{sT0}, v{vL16}
        v_and_b32 v{vT0}, 15, v{vLANE}
        v_lshrrev_b32 v{vT2}, 5, v{vLANE}
        v_lshl_add_u32 v{vT0}, v{vT2}, 4, v{vT0}
        v_lshlrev_b32 v{vT0}, 4, v{vT0}
        v_add_u32 v{vVA}, s{sT0}, v{vT0}
        ''')
    a('L_hook3:')
    switch_addr()
    a(f'''
    s_waitcnt vmcnt(0)
    s_barrier
    ''')
    stamp(a, 'h3')
    srd(a, SWB, pWOB, 512*1024)
    srd(a, SWA, pWOA, 512*1024)
    srd(a, SOUT, pOUT, 2097152)
    wo_dma(SWB, 96*1024)
    a(f'''
    s_mov_b32 s{sHK}, 7
    s_mov_b32 s{sHID}, 4
    s_cmp_lg_u32 s{sWV}, 0
    s_cbranch_scc1 L_back
    s_lshl_b32 s{sT0}, s{sTB}, 8
    s_lshr_b32 s{sT1}, s{sFB}, 2
    s_lshl_b32 s{sT1}, s{sT1}, 6
    s_add_u32 s{sT0}, s{sT0}, s{sT1}
    s_and_b32 s{sT1}, s{sFB}, 3
    s_lshl_b32 s{sT1}, s{sT1}, 2
    s_add_u32 s{sT0}, s{sT0}, s{sT1}
    s_add_u32 s{sT0}, s{sT0}, {F3}
    ''')
    signal(a, sT0)
    a('s_branch L_back')
    a('L_hook4:')
    a(f's_lshr_b32 s{sT0}, s{sTB3}, 1')
    a(f's_lshl_b32 s{sT0}, s{sT0}, 8')
    a(f's_add_u32 s{sT0}, s{sT0}, {F3}')
    poll_issue(a, 16, sT0)
    a(f'''
    s_mov_b32 s{sHK}, 8
    s_mov_b32 s{sHID}, 5
    s_branch L_back
    L_hook5:
    s_lshr_b32 s{sT0}, s{sTB3}, 1
    s_lshl_b32 s{sT0}, s{sT0}, 8
    s_add_u32 s{sT0}, s{sT0}, {F3}
    ''')
    poll_check(a, 16, sT0)
    def o_loads(dst, hbase):
        a(f'''
        s_and_b32 s{sT1}, s{sWV}, 1
        s_lshl_b32 s{sT0}, s{sTB3}, 1
        s_add_u32 s{sT0}, s{sT0}, s{sT1}
        s_lshl_b32 s{sT2}, s{sT0}, 16
        s_lshr_b32 s{sT1}, s{sWV}, 1
        s_lshl_b32 s{sT1}, s{sT1}, 13
        s_add_u32 s{sT2}, s{sT2}, s{sT1}
        s_add_u32 s{sT2}, s{sT2}, {WS_O + hbase*1024}
        ''')
        for i in range(8):
            if i == 4: a(f's_add_u32 s{sT2}, s{sT2}, 4096')
            a(f'buffer_load_dwordx4 {vr(dst+4*i,4)}, v{vL16}, {S4(SWS)}, s{sT2} offen offset:{(i%4)*1024} sc1')
    o_loads(vOFB, 32)
    a(f'''
    s_lshl_b32 s{sT0}, s{sT0}, 7
    s_add_u32 s{sT0}, s{sT0}, {WS_G}
    v_and_b32 v{vT0}, 31, v{vLANE}
    v_lshlrev_b32 v{vT0}, 2, v{vT0}
    buffer_load_dword v{vG}, v{vT0}, {S4(SWS)}, s{sT0} offen sc1
    s_mov_b32 s{sHK}, -1
    s_branch L_back
    ''')
    a('L_fallback:')
    a(f'''
    s_cmp_eq_u32 s{sPASS}, 0
    s_cselect_b32 s{sT0}, 32, 0
    s_lshl_b32 s{sT1}, s{sFB}, 1
    s_and_b32 s{sT2}, s{sTB}, 1
    s_add_u32 s{sT1}, s{sT1}, s{sT2}
    s_cmp_eq_u32 s{sPASS}, 0
    s_cselect_b32 s{sT0}, 32, s{sT1}
    s_lshl_b32 s{sT0}, s{sT0}, 1
    s_add_u32 s{sT0}, s{sT0}, s{sKH}
    s_lshl_b32 s{sT0}, s{sT0}, 16
    s_add_u32 s{sT0}, s{sT0}, {WS_KV}
    s_mov_b32 s{sT1}, s{sT0}
    s_mov_b32 s{sIT}, 0
    v_mov_b32 v{vMX}, 0xff800000
    v_mov_b32 v{vMX+1}, 0xff800000
    v_and_b32 v{vT0}, 15, v{vLANE}
    v_lshrrev_b32 v{vT2}, 5, v{vLANE}
    v_lshl_add_u32 v{vT0}, v{vT2}, 4, v{vT0}
    v_lshlrev_b32 v{vVA}, 4, v{vT0}
    s_waitcnt vmcnt(0) lgkmcnt(0)
    L_fb_max:
    buffer_load_dwordx4 {ar(KV(0),4)}, v{vL16}, {S4(SWS)}, s{sT1} offen sc1
    s_waitcnt vmcnt(0)
    ''')
    for q in range(2):
        a(f'v_mfma_f32_32x32x16_bf16 {vr(negm(q),16)}, {ar(KV(0),4)}, {ar(Q(q),4)}, 0')
    a.nop(13)
    for q in range(2):
        maxtree(a, f'v{vKA}', negm(q))
        a(f'v_max_f32 v{vMX+q}, v{vMX+q}, v{vKA}')
    a(f'''
    s_add_u32 s{sT1}, s{sT1}, 2048
    s_add_u32 s{sIT}, s{sIT}, 1
    s_cmp_lt_u32 s{sIT}, 32
    s_cbranch_scc1 L_fb_max
    ''')
    setm(a, '0')
    for q in range(2):
        for i in range(8):
            a(f'v_pk_mov_b32 {vr(O(q)+2*i,2)}, 0, 0')
    a(f'''
    s_mov_b32 s{sIT}, 0
    L_fb_sum:
    buffer_load_dwordx4 {ar(KV(0),4)}, v{vL16}, {S4(SWS)}, s{sT0} offen sc1
    s_mov_b64 exec, s[{sMASK}:{sMASK+1}]
    buffer_load_dwordx4 {ar(KV(0)+4,4)}, v{vVA}, {S4(SWS)}, s{sT0} offen offset:1024 sc1
    buffer_load_dwordx4 {ar(KV(0)+8,4)}, v{vVA}, {S4(SWS)}, s{sT0} offen offset:1536 sc1
    s_mov_b64 exec, -1
    s_waitcnt vmcnt(0)
    ''')
    for q in range(2):
        a(f'v_mfma_f32_32x32x16_bf16 {vr(S(q),16)}, {ar(KV(0),4)}, {ar(Q(q),4)}, {vr(negm(q),16)}')
    a.nop(13)
    for q in range(2):
        for j in range(16):
            a(f'v_exp_f32 v{S(q)+j}, v{S(q)+j}')
    a.nop(2)
    for q in range(2):
        a(f'v_smfmac_f32_32x32x32_bf16 {vr(O(q),16)}, {ar(KV(0)+4,4)}, {vr(S(q),8)}, v{vIDX}')
        a(f'v_smfmac_f32_32x32x32_bf16 {vr(O(q),16)}, {ar(KV(0)+8,4)}, {vr(S(q)+8,8)}, v{vIDX}')
    a(f'''
    s_add_u32 s{sT0}, s{sT0}, 2048
    s_add_u32 s{sIT}, s{sIT}, 1
    s_cmp_lt_u32 s{sIT}, 32
    s_cbranch_scc1 L_fb_sum
    ''')
    a.nop(14)
    a('s_branch L_fin')
    a('L_tail:')
    a(f'''
    s_lshr_b32 s{sT0}, s{sTB}, 1
    s_lshl_b32 s{sT0}, s{sT0}, 9
    s_and_b32 s{sT1}, s{sTB}, 1
    s_lshl_b32 s{sT1}, s{sT1}, 8
    s_add_u32 s{sT0}, s{sT0}, s{sT1}
    s_lshr_b32 s{sT1}, s{sFB}, 2
    s_lshl_b32 s{sT1}, s{sT1}, 6
    s_add_u32 s{sT0}, s{sT0}, s{sT1}
    s_and_b32 s{sT1}, s{sFB}, 3
    s_lshl_b32 s{sT1}, s{sT1}, 2
    s_add_u32 s{sT0}, s{sT0}, s{sT1}
    s_add_u32 s{sT0}, s{sT0}, {F4}
    s_waitcnt vmcnt(0)
    ''')
    stamp(a, 'e3pre')
    a(f'''
    s_barrier
    s_cmp_lg_u32 s{sWV}, 0
    s_cbranch_scc1 L_nosig4
    ''')
    signal(a, sT0)
    a('L_nosig4:')
    stamp(a, 'e3')
    wo_dma(SWA, 0)
    vWR3 = vKA
    a(f'''
    v_bfe_u32 v{vT0}, v{vLANE}, 2, 2
    v_lshrrev_b32 v{vT1}, 5, v{vLANE}
    v_lshl_add_u32 v{vT1}, v{vT1}, 2, v{vT0}
    v_lshrrev_b32 v{vT0}, 1, v{vT0}
    v_lshlrev_b32 v{vT0}, 6, v{vT0}
    v_lshl_add_u32 v{vT0}, v{vT1}, 7, v{vT0}
    v_bfe_u32 v{vT1}, v{vLANE}, 4, 1
    v_lshl_add_u32 v{vT0}, v{vT1}, 5, v{vT0}
    v_and_b32 v{vT1}, 1, v{vLANE}
    v_lshl_add_u32 v{vT0}, v{vT1}, 4, v{vT0}
    v_bfe_u32 v{vT1}, v{vLANE}, 1, 1
    v_lshl_add_u32 v{vT0}, v{vT1}, 3, v{vT0}
    s_lshr_b32 s{sT0}, s{sWV}, 1
    s_lshl_b32 s{sT0}, s{sT0}, 14
    v_add_u32 v{vMX}, s{sT0}, v{vT0}
    v_xor_b32 v{vMX+1}, 64, v{vMX}
    v_add_u32 v{vMX+2}, {96*1024}, v{vMX}
    v_add_u32 v{vMX+3}, {96*1024}, v{vMX+1}
    s_lshr_b32 s{sT3}, s{sTB3}, 2
    s_lshl_b32 s{sT3}, s{sT3}, 9
    s_add_u32 s{sT3}, s{sT3}, {F4}
    ''')
    def wreads(h, va):
        buf = h & 1
        return [f'ds_read_b64_tr_b16 {vr(vWF3+8*buf+4*u+2*j,2)}, v{va+u} offset:{h*2048+j*1024}' for u in range(2) for j in range(2)]
    def half(acc, frag, va, vm=False):
        for x in wreads(0, va): a(x)
        for h in range(8):
            buf = h & 1
            if h < 7:
                for x in wreads(h+1, va): a(x)
            a(f's_waitcnt lgkmcnt({4 if h < 7 else 0})' if not vm else f's_waitcnt vmcnt({7-h}) lgkmcnt({4 if h < 7 else 0})')
            for u in range(2):
                d = acc + 16*u
                a(f'v_mfma_f32_32x32x16_bf16 {vr(d,16)}, {vr(vWF3+8*buf+4*u,4)}, {vr(frag+4*h,4)}, {"0" if h == 0 else vr(d,16)}')
    half(vACB, vOFB, vMX+2)
    poll_issue(a, 32, sT3)
    a(f'v_sub_f32 v{vIDX}, 1.0, v{vG}')
    a.nop(6)
    for i in range(32):
        a(f'v_mul_f32 v{vACB+i}, v{vIDX}, v{vACB+i}')
    a('s_waitcnt vmcnt(1)')
    a('s_barrier')
    stamp(a, 'e4')
    poll_check(a, 32, sT3)
    stamp(a, 'f4')
    o_loads(vOFA, 0)
    half(vACA, vOFA, vMX, vm=True)
    a(f'''
    s_and_b32 s{sT0}, s{sWV}, 1
    s_lshr_b32 s{sT1}, s{sWV}, 1
    s_lshl_b32 s{sT2}, s{sT0}, 4
    s_add_u32 s{sT3}, s{sT2}, s{sT1}
    s_lshl_b32 s{sT3}, s{sT3}, 11
    v_add_u32 v{vKA}, s{sT3}, v{vL16}
    s_lshl_b32 s{sT3}, s{sT1}, 2
    s_add_u32 s{sT3}, s{sT3}, s{sT2}
    s_lshl_b32 s{sT3}, s{sT3}, 11
    v_add_u32 v{vVA}, s{sT3}, v{vL16}
    s_barrier
    ''')
    stamp(a, 'e5')
    a.nop(2)
    for d in range(4):
        for i in range(8):
            a(f'v_fma_f32 v{vACB+8*d+i}, v{vACA+8*d+i}, v{vG}, v{vACB+8*d+i}')
        a(f'ds_write_b128 v{vKA}, {vr(vACB+8*d,4)} offset:{d*8192}')
        a(f'ds_write_b128 v{vKA}, {vr(vACB+8*d+4,4)} offset:{d*8192+1024}')
    a(f'''
    v_and_b32 v{vT0}, 31, v{vLANE}
    v_lshrrev_b32 v{vT1}, 5, v{vLANE}
    v_lshlrev_b32 v{vT1}, 4, v{vT1}
    v_lshl_add_u32 v{vT0}, v{vT0}, 10, v{vT1}
    s_lshl_b32 s{sT2}, s{sTB3}, 1
    s_add_u32 s{sT2}, s{sT2}, s{sT0}
    s_lshl_b32 s{sT2}, s{sT2}, 15
    s_lshl_b32 s{sT3}, s{sNB}, 7
    s_add_u32 s{sT2}, s{sT2}, s{sT3}
    s_lshl_b32 s{sT3}, s{sT1}, 5
    s_add_u32 s{sT2}, s{sT2}, s{sT3}
    s_waitcnt lgkmcnt(0)
    s_barrier
    ''')
    for s in range(4):
        a(f'ds_read_b128 {vr(vOFA+8*s,4)}, v{vVA} offset:{s*2048}')
        a(f'ds_read_b128 {vr(vOFA+8*s+4,4)}, v{vVA} offset:{s*2048+1024}')
    a('s_waitcnt lgkmcnt(4)')
    for k in range(8):
        a(f'v_add_f32 v{vOFA+k}, v{vOFA+k}, v{vOFA+8+k}')
    a('s_waitcnt lgkmcnt(0)')
    for k in range(8):
        a(f'v_add_f32 v{vOFA+16+k}, v{vOFA+16+k}, v{vOFA+24+k}')
    for k in range(8):
        a(f'v_add_f32 v{vOFA+k}, v{vOFA+k}, v{vOFA+16+k}')
    for k in range(4):
        a(f'v_cvt_pk_bf16_f32 v{vOFA+k}, v{vOFA+2*k}, v{vOFA+2*k+1}')
    a(f'buffer_store_dwordx4 {vr(vOFA,4)}, v{vT0}, {S4(SOUT)}, s{sT2} offen')
    a(f'''
    s_or_b32 s{sT0}, s2, s{sWV}
    s_cmp_lg_u32 s{sT0}, 0
    s_cbranch_scc1 L_end
    s_mov_b32 s{sT0}, {WS_F}
    ''')
    signal(a, sT0)
    a('L_end:')
    if OPT.stamp:
        a('s_waitcnt vmcnt(0)')
        a('s_memrealtime s[4:5]')
        stamp(a, 'end')
        a(f'''
        s_waitcnt lgkmcnt(0)
        s_lshl_b32 s{sT0}, s2, 3
        s_add_u32 s{sT0}, s{sT0}, s{sWV}
        s_lshl_b32 s{sT0}, s{sT0}, 6
        s_add_u32 s{sT0}, s{sT0}, {WS_ST}
        v_mov_b32 v{vT0}, 0
        s_sub_u32 s4, s4, s100
        v_mov_b32 v{vT1}, s4
        buffer_store_dword v{vT1}, v{vT0}, {S4(SWS)}, s{sT0} offen offset:60
        v_mov_b32 v{vT1}, s100
        buffer_store_dword v{vT1}, v{vT0}, {S4(SWS)}, s{sT0} offen offset:56
        ''')
        for i in range(10):
            a(f'v_mov_b32 v{vT1}, s{STAMP0+2*i}')
            a(f'buffer_store_dword v{vT1}, v{vT0}, {S4(SWS)}, s{sT0} offen offset:{4*i}')
    a('L_done:')
    a('s_endpgm')
    hdr = f'''; gated mix of an MHA block and an MQA block, one persistent launch (256 workgroups, one per CU):
; @launch grid=(256,1,1) block=(512,1,1) lds={LDS_BYTES}
.amdgcn_target "amdgcn-amd-amdhsa--gfx950"
.text
'''
    return hdr + a.text() + kd(NAME, NV, NA, 102)

if __name__ == '__main__':
    fn = sys.argv[1] if len(sys.argv) > 1 else 'gated_mix__mha_block__grouped_kv_mqa__prompt.s'
    for arg in sys.argv[2:]:
        if arg == 'stamp': OPT.stamp = True
        elif '=' in arg:
            k, v = arg.split('=')
            setattr(OPT, k, type(getattr(OPT, k))(v))
    open(fn, 'w').write(gen())
```

```python
from asmlib import *
import struct, sys

NAME = 'gated_mix__mha_block__grouped_kv_mqa__prompt_kernel'
WS_Q  = 0
WS_KV = 4 << 20
WS_G  = 0x880000
WS_O  = 9 << 20
WS_F  = 13 << 20
WS_ST = 14 << 20
WS_SIZE = 16 << 20
F1, F2, F3, F4 = WS_F + 4096, WS_F + 8192, WS_F + 12288, WS_F + 16384
CSCALE = 0.25 * 1.4426950408889634
LDS_BYTES = 163840
SPIN_MAX = 400000
def f2u(x): return struct.unpack('<I', struct.pack('<f', x))[0]

class Opt:
    stamp = False
    delta = 60.0
    exp = ''
    prof = 'main'
    rot = 1
    dhook = 4
    denorm = 3
    sigb = 1
    ntx = 0
    ntw = 0
    nto = 0
    la = 10
    la0 = 5
OPT = Opt()

pWQB, pWK, pWV, pWOB, pGATE, pOUT, pWOA, pWS, pX, pWQKV = 36, 38, 40, 42, 44, 46, 48, 50, 32, 34
SX, SWA, SWB, SKV, SG, SWS = 8, 12, 16, 20, 24, 28
SOUT = SX
sWV, sTB, sFB, sTAG, sIT, sHK, sHID, sPASS = 52, 53, 54, 55, 56, 57, 58, 59
sT0, sT1, sT2, sT3, sT4, sT5 = 60, 61, 62, 63, 64, 65
sSC = 67
sMASK = 68
sCC = 70
sTB3, sNB, sKH, sU, sSPIN, sOOFF = 74, 75, 76, 77, 78, 79
sROT = 3
sDEF = 6
STAMP0 = 80
vLANE, vL16, vKA, vVA, vIDX, vG, vT0, vT1, vT2, vT3, vFL, vMX = 0, 1, 2, 3, 4, 5, 6, 7, 8, 9, 10, 12
negm = lambda q: 16 + 16*q
S = lambda b: 48 + 16*b
O = lambda q: 80 + 16*q
vOFB = 112
vACB = 144
vWF3 = 176
vACA = 16
vOFA = 48
NV = 192
Q = lambda q: 4*q
QN = lambda q: 8 + 4*q
KV = lambda s: 16 + 12*s
NA = 40

def srd(a, d, base, n):
    a(f's_mov_b32 s{d}, s{base}')
    a(f's_mov_b32 s{d+1}, s{base+1}')
    a(f's_mov_b32 s{d+2}, {n}')
    a(f's_mov_b32 s{d+3}, 0x00020000')
def S4(d): return f's[{d}:{d+3}]'

def swap23(a, dst, src, t):
    a(f'v_and_b32 {dst}, 0x13, {src}')
    a(f'v_and_b32 {t}, 4, {src}')
    a(f'v_lshl_or_b32 {dst}, {t}, 1, {dst}')
    a(f'v_and_b32 {t}, 8, {src}')
    a(f'v_lshrrev_b32 {t}, 1, {t}')
    a(f'v_or_b32 {dst}, {dst}, {t}')

PROFILES = {
 'main': {'start':0, 'b0':1, 'pend':2, 'b9':3, 'endB':4, 'startA':5, 'endA':6, 'e3':7, 'f4':8, 'end':9},
 'p': {'start':0, 'karg':1, 'iss0':2, 'iss2':3, 'b0pre':4, 'b0':5, 'b2':6, 'b4':7, 'b7':8, 'end':9, 'job':6, 'sig':7},
 'p2': {'start':0, 'b0':1, 'b7':2, 'b8':3, 'f1':4, 'kvi':5, 'pend':6, 'b9':7, 'loop0':8, 'end':9, 'gend':4},
 'mid': {'start':0, 'endB':1, 'chkB':2, 'e1B':3, 'e2preB':4, 'e2B':5, 'startA':6, 'loop1':7, 'h3':8, 'end':9},
 'loop': {'start':0, 'loop0':1, 'it2':2, 'it4':3, 'it6':4, 'it8':5, 'it10':6, 'it13':7, 'endB':8, 'end':9},
 'pb': {'start':0, 'b0':1, 'b1':2, 'b2':3, 'b3':4, 'b4':5, 'b5':6, 'b6':7, 'b7':8, 'end':9},
 'pa': {'start':0, 'a0':1, 'a1':2, 'a2':3, 'a3':4, 'a4':5, 'a5':6, 'a6':7, 'a7':8, 'end':9},
 'tail': {'start':0, 'endA':1, 'e1A':2, 'e2A':3, 'e3pre':4, 'e3':5, 'e4':6, 'f4':7, 'e5':8, 'end':9},
}
def stamp(a, name, only=None):
    if not OPT.stamp: return
    i = PROFILES[OPT.prof].get(name)
    if i is None: return
    if only is None:
        a(f's_memtime s[{STAMP0+2*i}:{STAMP0+2*i+1}]')
    else:
        lab = a.label('L_st')
        a(f's_cmp_eq_u32 s{sPASS}, {only}')
        a(f's_cbranch_scc0 {lab}')
        a(f's_memtime s[{STAMP0+2*i}:{STAMP0+2*i+1}]')
        a(f'{lab}:')

def signal(a, soff):
    a(f'''
    v_mov_b32 v{vT0}, 0
    v_mov_b32 v{vT1}, s{sTAG}
    s_mov_b64 exec, 1
    buffer_store_dword v{vT1}, v{vT0}, {S4(SWS)}, s{soff} offen sc1
    s_mov_b64 exec, -1
    ''')

def flag_addr(a, nflags):
    a(f'''
    v_and_b32 v{vT0}, {nflags-1}, v{vLANE}
    v_lshrrev_b32 v{vT1}, 2, v{vT0}
    v_and_b32 v{vT0}, 3, v{vT0}
    v_lshlrev_b32 v{vT0}, 2, v{vT0}
    v_lshl_add_u32 v{vT0}, v{vT1}, 6, v{vT0}
    ''')
def poll_issue(a, nflags, soff):
    flag_addr(a, nflags)
    a(f'buffer_load_dword v{vFL}, v{vT0}, {S4(SWS)}, s{soff} offen sc1')
def poll_check(a, nflags, soff, wait='s_waitcnt vmcnt(0)'):
    lo, ok = a.label('L_spin'), a.label('L_ok')
    a(wait)
    a(f'v_cmp_ne_u32 vcc, s{sTAG}, v{vFL}')
    a(f's_cbranch_vccz {ok}')
    flag_addr(a, nflags)
    a(f's_mov_b32 s{sSPIN}, {SPIN_MAX}')
    a(f'''
    {lo}:
    buffer_load_dword v{vFL}, v{vT0}, {S4(SWS)}, s{soff} offen sc1
    s_waitcnt vmcnt(0)
    v_cmp_ne_u32 vcc, s{sTAG}, v{vFL}
    s_cbranch_vccz {ok}
    s_sleep 1
    s_sub_u32 s{sSPIN}, s{sSPIN}, 1
    s_cmp_lg_u32 s{sSPIN}, 0
    s_cbranch_scc1 {lo}
    {ok}:
    ''')

def dma_linear(a, so, n, srdreg, va, sc1=True):
    for i in range(n):
        if i % 4 == 0:
            if i: a(f's_add_u32 s{so}, s{so}, 4096')
            a(f's_mov_b32 m0, s{so}')
            a('s_nop 0')
        a(f'buffer_load_dwordx4 v{va}, {S4(srdreg)}, s{so} offen offset:{(i%4)*1024}{" sc1" if sc1 else ""} lds')
def dma_moved(a, sg, sl, n, srdreg, va):
    for i in range(n):
        if i % 4 == 0:
            if i:
                a(f's_add_u32 s{sg}, s{sg}, 4096')
                a(f's_add_u32 s{sl}, s{sl}, 4096')
            a(f's_mov_b32 m0, s{sl}')
            a('s_nop 0')
        a(f'buffer_load_dwordx4 v{va}, {S4(srdreg)}, s{sg} offen offset:{(i%4)*1024} sc1 lds')

def maxtree(a, dst, r):
    a(f'v_max3_f32 {dst}, v{r}, v{r+1}, v{r+2}')
    a(f'v_max3_f32 v{vT0}, v{r+3}, v{r+4}, v{r+5}')
    a(f'v_max3_f32 v{vT2}, v{r+6}, v{r+7}, v{r+8}')
    a(f'v_max3_f32 v{vT3}, v{r+9}, v{r+10}, v{r+11}')
    a(f'v_max3_f32 {dst}, {dst}, v{r+12}, v{r+13}')
    a(f'v_max3_f32 v{vT0}, v{vT0}, v{r+14}, v{r+15}')
    a(f'v_max3_f32 {dst}, {dst}, v{vT2}, v{vT3}')
    a(f'v_max_f32 {dst}, {dst}, v{vT0}')

def setm(a, margin):
    a(f'v_mov_b32 v{vT0}, v{vMX}')
    a(f'v_mov_b32 v{vT2}, v{vMX+1}')
    a.nop(1)
    a(f'v_permlane32_swap_b32 v{vT0}, v{vMX}')
    a(f'v_permlane32_swap_b32 v{vT2}, v{vMX+1}')
    a.nop(1)
    for q, t in ((0, vT0), (1, vT2)):
        a(f'v_max_f32 v{t}, v{t}, v{vMX+q}')
    for q, t in ((0, vT0), (1, vT2)):
        a(f'v_ceil_f32 v{t}, v{t}')
    for q, t in ((0, vT0), (1, vT2)):
        a(f'v_sub_f32 v{negm(q)}, {margin}, v{t}')
        a(f'v_sub_f32 v{negm(q)+1}, {margin}, v{t}')
    for q in range(2):
        for i in range(1, 8):
            a(f'v_pk_mov_b32 {vr(negm(q)+2*i,2)}, {vr(negm(q),2)}, {vr(negm(q),2)}')

def gen():
    a = Asm()
    a.lines.append(head(NAME))
    a(f'''
    s_cmp_ge_u32 s2, 256
    s_cbranch_scc1 L_done
    s_load_dwordx4 s[32:35], s[0:1], 0
    s_load_dwordx8 s[36:43], s[0:1], 32
    s_load_dwordx4 s[44:47], s[0:1], 64
    s_load_dwordx2 s[48:49], s[0:1], 16
    s_load_dwordx2 s[50:51], s[0:1], 88
    ''')
    if OPT.stamp:
        a('s_memrealtime s[100:101]')
        for i in range(10): a(f's_memtime s[{STAMP0+2*i}:{STAMP0+2*i+1}]')
    a(f'''
    v_lshrrev_b32 v{vT0}, 6, v0
    v_and_b32 v{vLANE}, 63, v0
    v_readfirstlane_b32 s{sWV}, v{vT0}
    v_lshlrev_b32 v{vL16}, 4, v{vLANE}
    v_mov_b32 v176, 0
    v_mov_b32 v177, 0
    s_and_b32 s{sT0}, s2, 7
    s_lshr_b32 s{sT1}, s2, 3
    s_lshr_b32 s{sTB}, s{sT0}, 1
    s_lshl_b32 s{sTB}, s{sTB}, 3
    s_and_b32 s{sT2}, s{sT1}, 7
    s_add_u32 s{sTB}, s{sTB}, s{sT2}
    s_and_b32 s{sFB}, s{sT0}, 1
    s_lshl_b32 s{sFB}, s{sFB}, 2
    s_lshr_b32 s{sT3}, s{sT1}, 3
    s_add_u32 s{sFB}, s{sFB}, s{sT3}
    s_mov_b32 s{sTB3}, s{sTB}
    s_mov_b32 s{sNB}, s{sFB}
    s_and_b32 s{sU}, s{sWV}, 3
    s_lshr_b32 s{sKH}, s{sWV}, 2
    s_lshl_b32 s{sROT}, s{sT3}, 1
    s_add_u32 s{sROT}, s{sROT}, s{sT2}
    s_and_b32 s{sROT}, s{sROT}, {7 if OPT.rot == 1 else (4 if OPT.rot == 2 else (6 if OPT.rot == 3 else 0))}
    s_mov_b32 s{sMASK}, 0xffff
    s_mov_b32 s{sMASK+1}, 0xffff
    s_mov_b32 s{sSC}, {hex(f2u(CSCALE))}
    s_waitcnt lgkmcnt(0)
    s_add_u32 s4, s{pWS}, {WS_F}
    s_addc_u32 s5, s{pWS+1}, 0
    s_load_dword s{sTAG}, s[4:5], 0
    ''')
    stamp(a, 'karg')
    srd(a, SX, pX, 2097152)
    srd(a, SWA, pWQKV, 512*3072)
    srd(a, SWB, pWQB, 512*1024)
    srd(a, SWS, pWS, WS_SIZE)
    srd(a, SG, pGATE, 1024)
    a(f'''
    s_bitcmp1_b32 s{sFB}, 0
    s_cselect_b32 s{SKV}, s{pWV}, s{pWK}
    s_cselect_b32 s{SKV+1}, s{pWV+1}, s{pWK+1}
    s_mov_b32 s{SKV+2}, 16384
    s_mov_b32 s{SKV+3}, 0x00020000
    s_cmp_lt_u32 s{sWV}, 2
    s_cbranch_scc1 L_g0
    s_cmp_lt_u32 s{sWV}, 4
    s_cbranch_scc1 L_g1
    s_cmp_eq_u32 s{sWV}, 4
    s_cbranch_scc1 L_w4
    s_cmp_eq_u32 s{sWV}, 5
    s_cbranch_scc1 L_w5
    s_cmp_eq_u32 s{sWV}, 6
    s_cbranch_scc1 L_w6
    ''')
    vA = 112
    SLOT = 40960
    NTW = ' nt' if OPT.ntw else ''
    NTX = ' nt' if OPT.ntx else ''
    def ld_setup():
        a(f'''
        v_lshrrev_b32 v{vT0}, 4, v{vLANE}
        v_and_b32 v{vT1}, 7, v{vLANE}
        v_xor_b32 v{vT1}, v{vT1}, v{vT0}
        v_lshlrev_b32 v{vT1}, 4, v{vT1}
        v_lshrrev_b32 v{vT2}, 3, v{vLANE}
        v_lshl_add_u32 v{vA}, v{vT2}, 10, v{vT1}
        v_xor_b32 v{vA+1}, 64, v{vA}
        v_add_u32 v{vA+1}, 7168, v{vA+1}
        v_add_u32 v{vA+2}, {2*7168}, v{vA}
        v_add_u32 v{vA+3}, {2*7168}, v{vA+1}
        v_lshrrev_b32 v{vT1}, 2, v{vLANE}
        v_xor_b32 v{vT0}, v{vT0}, v{vT1}
        v_and_b32 v{vT0}, 1, v{vT0}
        v_lshlrev_b32 v{vT0}, 6, v{vT0}
        v_and_b32 v{vT1}, 3, v{vLANE}
        v_lshl_add_u32 v{vT0}, v{vT1}, 4, v{vT0}
        v_lshl_add_u32 v{vA+4}, v{vT2}, 10, v{vT0}
        v_mul_u32_u24 v{vT2}, 3072, v{vT2}
        v_add_u32 v{vA+8}, v{vT2}, v{vT0}
        s_lshl_b32 s{sT0}, s{sTB}, 16
        s_lshl_b32 s{sT5}, s{sFB}, 7
        ''')
        for i in range(1, 4):
            a(f'v_add_u32 v{vA+4+i}, {7168*i}, v{vA+4}')
            a(f'v_add_u32 v{vA+8+i}, {23552*i}, v{vA+8}')
    def ld_group(c, kind, g, first):
        slot = (c & 3)*SLOT
        if first:
            a(f's_add_u32 s{sT4}, s{sROT}, {c}')
            a(f's_and_b32 s{sT4}, s{sT4}, 7')
            a(f's_lshl_b32 s{sT1}, s{sT4}, 7')
            a(f's_add_u32 s{sT1}, s{sT1}, s{sT0}')
            a(f's_lshl_b32 s{sT2}, s{sT4}, 16')
            a(f's_add_u32 s{sT2}, s{sT2}, s{sT5}')
            a(f's_mul_i32 s{sT3}, s{sT4}, {64*3072}')
            a(f's_add_u32 s{sT3}, s{sT3}, s{sT5}')
        strip = {'x': 0, 'qb': 1, 'qa': 2, 'ka': 3, 'va': 4}[kind]
        a(f's_mov_b32 m0, {slot + strip*8192 + g*4096}')
        if kind == 'x':
            sreg, off, srdr, va, nt = sT1, g*32768, SX, vA, NTX
        elif kind == 'qb':
            sreg, off, srdr, va, nt = sT2, g*32768, SWB, vA+4, NTW
        else:
            sreg, off, srdr, va, nt = sT3, g*32*3072 + (strip-2)*1024, SWA, vA+8, NTW
        a(f's_add_u32 s{sT4}, s{sreg}, {off}')
        for i in range(4):
            a(f'buffer_load_dwordx4 v{va+i}, {S4(srdr)}, s{sT4} offen offset:{i*1024}{nt} lds')
    def loader(groups):
        ld_setup()
        seq = [(c, k, g, n == 0) for c in range(8) for n, (k, g) in enumerate(groups)]
        pos = 0
        def issue_to(n):
            nonlocal pos
            while pos < min(n, 40):
                ld_group(*seq[pos]); pos += 1
        a('s_barrier'); issue_to(5); stamp(a, 'iss0')
        for c in range(8):
            lim = min(5*(c+1) + (OPT.la if c else min(OPT.la, OPT.la0)), 5*(c+3))
            issue_to(lim)
            if c == 0: stamp(a, 'iss2')
            a(f's_waitcnt vmcnt({4*(pos - 5*(c+1))})')
            if c == 0: stamp(a, 'b0pre')
            stamp(a, f'a{c}')
            a('s_barrier')
            stamp(a, f'b{c}')
        a('s_branch L_kvb')
    a('L_w7:')
    loader([('qa', 1), ('ka', 0), ('ka', 1), ('va', 0), ('va', 1)])
    a('L_w6:')
    loader([('x', 0), ('x', 1), ('qb', 0), ('qb', 1), ('qa', 0)])
    vE = 16
    def xs_addr():
        a(f'''
        v_and_b32 v{vT0}, 15, v{vLANE}
        v_lshrrev_b32 v{vT1}, 4, v{vLANE}
        v_xor_b32 v{vT1}, v{vT1}, v{vT0}
        v_lshlrev_b32 v{vT1}, 4, v{vT1}
        v_lshl_add_u32 v{vA}, v{vT0}, 10, v{vT1}
        v_add_u32 v{vA}, 131072, v{vA}
        v_xor_b32 v{vA+1}, 64, v{vA}
        v_xor_b32 v{vA+2}, 128, v{vA}
        v_xor_b32 v{vA+3}, 192, v{vA}
        ''')
    a('L_w4:')
    a(f'''
    s_lshr_b32 s{sT4}, s{sFB}, 1
    s_lshl_b32 s{sT0}, s{sTB}, 2
    s_add_u32 s{sT0}, s{sT0}, s{sT4}
    s_lshl_b32 s{sT0}, s{sT0}, 14
    ''')
    for r in range(16):
        if r % 4 == 0:
            a(f's_mov_b32 m0, {131072 + r*1024}')
            if r: a(f's_add_u32 s{sT0}, s{sT0}, 4096')
        a(f'v_xor_b32 v{vA+8+(r&3)}, {r*16}, v{vL16}')
        a(f'buffer_load_dwordx4 v{vA+8+(r&3)}, {S4(SX)}, s{sT0} offen offset:{(r&3)*1024} lds')
    a(f's_mov_b32 s{sT0}, 0')
    a(f's_mov_b32 s{sT1}, {131072+16384}')
    for i in range(16):
        if i % 4 == 0:
            if i:
                a(f's_add_u32 s{sT0}, s{sT0}, 4096')
                a(f's_add_u32 s{sT1}, s{sT1}, 4096')
            a(f's_mov_b32 m0, s{sT1}')
            a('s_nop 0')
        a(f'buffer_load_dwordx4 v{vL16}, {S4(SKV)}, s{sT0} offen offset:{(i%4)*1024} lds')
    vGF = 128
    a(f'''
    s_bitcmp1_b32 s{sFB}, 0
    s_cbranch_scc1 L_w4ng
    v_lshrrev_b32 v{vT0}, 4, v{vLANE}
    v_lshlrev_b32 v{vT0}, 4, v{vT0}
    s_mov_b32 s{sCC}, 0x00010001
    s_mov_b32 s{sCC+1}, 0x00010001
    s_mov_b64 exec, s[{sCC}:{sCC+1}]
    ''')
    for ks in range(16):
        a(f'buffer_load_dwordx4 {vr(vGF+4*ks,4)}, v{vT0}, {S4(SG)}, 0 offen offset:{ks*64}')
    a('s_mov_b64 exec, -1')
    a('L_w4ng:')
    stamp(a, 'iss0')
    a('s_barrier')
    xs_addr()
    a(f'''
    v_bfe_u32 v{vT0}, v{vLANE}, 2, 2
    v_lshrrev_b32 v{vT1}, 4, v{vLANE}
    v_lshl_add_u32 v{vT0}, v{vT1}, 3, v{vT0}      ; 8g + r
    v_and_b32 v{vT1}, 3, v{vLANE}
    v_lshlrev_b32 v{vT1}, 3, v{vT1}
    v_lshl_add_u32 v{vA+4}, v{vT0}, 5, v{vT1}
    v_add_u32 v{vA+4}, {131072+16384}, v{vA+4}
    v_and_b32 v{vT0}, 15, v{vLANE}
    s_and_b32 s{sT1}, s{sT4}, 1
    s_lshl_b32 s{sT2}, s{sT1}, 4
    v_add_u32 v{vT3}, s{sT2}, v{vT0}
    ''')
    swap23(a, f'v{vA+5}', f'v{vT3}', f'v{vT1}')
    a(f'''
    v_bfe_u32 v{vT1}, v{vLANE}, 4, 1
    v_lshl_add_u32 v{vA+5}, v{vT1}, 5, v{vA+5}
    v_lshl_add_u32 v{vA+6}, v{vT1}, 4, v{vT0}      ; h*16 + dh
    s_lshl_b32 s{sT2}, s{sT1}, 9
    s_add_u32 s{sT2}, s{sT2}, 1024
    v_lshlrev_b32 v{vA+6}, 4, v{vA+6}
    v_add_u32 v{vA+6}, s{sT2}, v{vA+6}
    v_lshlrev_b32 v{vA+5}, 4, v{vA+5}
    s_bitcmp1_b32 s{sFB}, 0
    s_cselect_b64 vcc, -1, 0
    v_lshrrev_b32 v{vT1}, 5, v{vLANE}
    v_cndmask_b32 v{vA+5}, v{vA+5}, v{vA+6}, vcc
    v_lshl_add_u32 v{vA+5}, v{vT1}, 3, v{vA+5}
    s_lshl_b32 s{sT0}, s{sTB}, 1
    s_lshr_b32 s{sT1}, s{sT4}, 1
    s_add_u32 s{sT0}, s{sT0}, s{sT1}
    s_lshl_b32 s{sT0}, s{sT0}, 11
    s_add_u32 s{sT0}, s{sT0}, {WS_KV + 32*131072}
    s_lshr_b32 s{sT1}, s2, 2
    s_lshl_b32 s{sT1}, s{sT1}, 6
    s_and_b32 s{sT2}, s2, 3
    s_lshl_b32 s{sT2}, s{sT2}, 2
    s_add_u32 s{sT1}, s{sT1}, s{sT2}
    s_add_u32 s{sT1}, s{sT1}, {F1}
    s_waitcnt vmcnt(0) lgkmcnt(0)
    s_add_u32 s{sTAG}, s{sTAG}, 1
    ''')
    stamp(a, 'b0pre')
    def early_reads(b):
        for k in range(4):
            ks = 4*b + k
            base = vE + 32*(b & 1) + 8*k
            a(f'ds_read_b128 {vr(base,4)}, v{vA+k} offset:{b*256}')
            a(f'ds_read_b64_tr_b16 {vr(base+4,2)}, v{vA+4} offset:{ks*1024}')
            a(f'ds_read_b64_tr_b16 {vr(base+6,2)}, v{vA+4} offset:{ks*1024+128}')
    def early_job(kind):
        early_reads(0)
        for b in range(4):
            a('s_waitcnt lgkmcnt(0)')
            if b < 3: early_reads(b+1)
            for k in range(4):
                base = vE + 32*(b & 1) + 8*k
                X, W = vr(base, 4), vr(base+4, 4)
                A_, B_ = (W, X) if kind == 'k' else (X, W)
                a(f'v_mfma_f32_16x16x32_bf16 {vr(vMX,4)}, {A_}, {B_}, {"0" if b == 0 and k == 0 else vr(vMX,4)}')
                if kind == 'k':
                    a(f'v_mfma_f32_16x16x32_bf16 {vr(vA+8,4)}, {vr(vGF+16*b+4*k,4)}, {X}, {"0" if b == 0 and k == 0 else vr(vA+8,4)}')
        a.nop(8)
        a(f'v_cvt_pk_bf16_f32 v{vMX}, v{vMX}, v{vMX+1}')
        a(f'v_cvt_pk_bf16_f32 v{vMX+1}, v{vMX+2}, v{vMX+3}')
        a(f'buffer_store_dwordx2 {vr(vMX,2)}, v{vA+5}, {S4(SWS)}, s{sT0} offen sc1')
        if kind == 'k':
            a(f'''
            v_mul_f32 v{vA+8}, {hex(f2u(-1.4426950408889634))}, v{vA+8}
            v_exp_f32 v{vA+8}, v{vA+8}
            s_lshl_b32 s{sT0}, s{sTB}, 2
            s_add_u32 s{sT0}, s{sT0}, s{sT4}
            v_add_f32 v{vA+8}, 1.0, v{vA+8}
            v_rcp_f32 v{vA+8}, v{vA+8}
            s_lshl_b32 s{sT0}, s{sT0}, 6
            s_add_u32 s{sT0}, s{sT0}, {WS_G}
            v_lshlrev_b32 v{vT0}, 2, v{vLANE}
            s_mov_b64 exec, 0xffff
            buffer_store_dword v{vA+8}, v{vT0}, {S4(SWS)}, s{sT0} offen sc1
            s_mov_b64 exec, -1
            ''')
        a('s_branch L_w4b')
    a(f's_bitcmp1_b32 s{sFB}, 0')
    a('s_cbranch_scc1 L_w4v')
    early_job('k')
    a('L_w4v:')
    early_job('v')
    a('L_w4b:')
    stamp(a, 'job')
    def f1_issue():
        a(f'v_lshlrev_b32 v{vT0}, 6, v{vLANE}')
        a(f's_mov_b32 s{sT0}, {F1}')
        a(f'buffer_load_dwordx4 {vr(vMX,4)}, v{vT0}, {S4(SWS)}, s{sT0} offen sc1')
    def f1_test():
        a(f'''
        s_waitcnt vmcnt(0)
        v_cmp_ne_u32 vcc, s{sTAG}, v{vMX}
        v_cmp_ne_u32 s[{sCC}:{sCC+1}], s{sTAG}, v{vMX+1}
        s_or_b64 vcc, vcc, s[{sCC}:{sCC+1}]
        v_cmp_ne_u32 s[{sCC}:{sCC+1}], s{sTAG}, v{vMX+2}
        v_cmp_ne_u32 s[{sCC+2}:{sCC+3}], s{sTAG}, v{vMX+3}
        s_or_b64 vcc, vcc, s[{sCC}:{sCC+1}]
        s_or_b64 vcc, vcc, s[{sCC+2}:{sCC+3}]
        ''')
    def kvb_srd():
        a(f'''
        s_add_u32 s{SKV}, s{pWS}, {WS_KV + 32*131072}
        s_addc_u32 s{SKV+1}, s{pWS+1}, 0
        s_mov_b32 s{SKV+2}, 131072
        s_mov_b32 s{SKV+3}, 0x00020000
        ''')
    for c in range(6):
        stamp(a, f'a{c}')
        a('s_barrier')
        stamp(a, f'b{c}')
        if c == OPT.sigb:
            a('s_waitcnt vmcnt(0)')
            signal(a, sT1)
            stamp(a, 'sig')
    a('s_branch L_w45')
    a('L_w5:')
    a('s_barrier')
    a('s_waitcnt lgkmcnt(0)')
    a(f's_add_u32 s{sTAG}, s{sTAG}, 1')
    for c in range(6):
        a('s_barrier')
    a('L_w45:')
    kvb_srd()
    f1_issue()
    a('s_barrier')
    a(f's_mov_b32 s{sSPIN}, {SPIN_MAX}')
    f1_test()
    a('s_cbranch_vccz L_f1_early')
    f1_issue()
    a('s_barrier')
    a('L_f1_spin:')
    f1_test()
    a(f'''
    s_cbranch_vccz L_f1_go
    s_sleep 1
    buffer_load_dwordx4 {vr(vMX,4)}, v{vT0}, {S4(SWS)}, s{sT0} offen sc1
    s_sub_u32 s{sSPIN}, s{sSPIN}, 1
    s_cmp_lg_u32 s{sSPIN}, 0
    s_cbranch_scc1 L_f1_spin
    s_branch L_f1_go
    L_f1_early:
    s_barrier
    L_f1_go:
    s_and_b32 s{sT0}, s{sWV}, 1
    s_lshl_b32 s{sT0}, s{sT0}, 16
    ''')
    stamp(a, 'f1')
    dma_linear(a, sT0, 16, SKV, vL16)
    a('s_branch L_kvb2')
    a('L_kvb:')
    a('s_waitcnt lgkmcnt(0)')
    a(f's_add_u32 s{sTAG}, s{sTAG}, 1')
    kvb_srd()
    a('L_kvb2:')
    a('s_barrier')
    stamp(a, 'b8')
    a('s_waitcnt vmcnt(0)')
    a('s_barrier')
    stamp(a, 'b9')
    a(f's_mul_i32 s{sT0}, s{sU}, {12*1024}')
    a(f's_add_u32 s{sT0}, s{sT0}, 16384')
    dma_linear(a, sT0, 12, SKV, vL16)
    a(f's_mul_i32 s{sT0}, s{sU}, {12*1024}')
    a(f's_add_u32 s{sT0}, s{sT0}, {65536+16384}')
    dma_linear(a, sT0, 12, SKV, vL16)
    stamp(a, 'kvi')
    a('s_branch L_p_end')
    vXR, vWR, vXF, vWF, vACC, vST = 16, 24, 80, 96, 112, 176
    def reads(c, ks, sp):
        buf = (c*4 + ks) & 1
        hs = (c & 3) >> 1
        so = (c & 1) * SLOT
        out = []
        for j in range(2):
            out.append(f'ds_read_b128 {vr(vXF+8*buf+4*j,4)}, v{vXR+4*hs+ks} offset:{so+4096*j}')
        for u in range(2):
            for j2 in range(2):
                out.append(f'ds_read_b64_tr_b16 {vr(vWF+8*buf+4*u+2*j2,2)}, v{vWR+hs} offset:{so+u*8192+ks*2048+j2*512}')
        return out
    def mfmas(c, ks, sp):
        buf = (c*4 + ks) & 1
        first = (c == 0 and ks == 0)
        out = []
        for j in range(2):
            for u in range(2):
                d = vACC + 32*j + 16*u
                X = vr(vXF+8*buf+4*j, 4); W = vr(vWF+8*buf+4*u, 4)
                A_, B_ = (X, W) if (sp == 1 and u == 1) else (W, X)
                out.append(f'v_mfma_f32_32x32x16_bf16 {vr(d,16)}, {A_}, {B_}, {"0" if first else vr(d,16)}')
        return out
    def interleave(m, r):
        out = []; r = list(r)
        for x in m:
            out.append(x)
            for _ in range(2):
                if r: out.append(r.pop(0))
        return out + r
    def cvt(d, scale):
        if scale:
            for i in range(8):
                a(f'v_pk_mul_f32 {vr(d+2*i,2)}, {vr(d+2*i,2)}, s[{sSC-1}:{sSC}] op_sel:[0,1] op_sel_hi:[1,1]')
        for i in range(8):
            a(f'v_cvt_pk_bf16_f32 v{d+i}, v{d+2*i}, v{d+2*i+1}')
    def gemm(sp):
        a(f'L_g{sp}:')
        a(f'''
        v_and_b32 v{vT0}, 31, v{vLANE}
        v_lshrrev_b32 v{vT1}, 5, v{vLANE}
        v_bfe_u32 v{vT2}, v{vLANE}, 1, 3
        v_xor_b32 v{vT1}, v{vT1}, v{vT2}
        v_lshlrev_b32 v{vT1}, 4, v{vT1}
        v_lshl_add_u32 v{vXR}, v{vT0}, 7, v{vT1}
        ''')
        for ks in range(1, 4):
            a(f'v_xor_b32 v{vXR+ks}, {ks*32}, v{vXR}')
        for i in range(4):
            a(f'v_add_u32 v{vXR+4+i}, {2*SLOT}, v{vXR+i}')
        a(f'''
        v_bfe_u32 v{vT0}, v{vLANE}, 2, 2
        v_lshrrev_b32 v{vT1}, 5, v{vLANE}
        v_lshl_add_u32 v{vT1}, v{vT1}, 3, v{vT0}
        v_lshrrev_b32 v{vT0}, 1, v{vT0}
        v_lshlrev_b32 v{vT0}, 6, v{vT0}
        v_lshl_add_u32 v{vT0}, v{vT1}, 7, v{vT0}
        v_bfe_u32 v{vT1}, v{vLANE}, 4, 1
        v_lshl_add_u32 v{vT0}, v{vT1}, 5, v{vT0}
        v_and_b32 v{vT1}, 3, v{vLANE}
        v_lshl_add_u32 v{vT0}, v{vT1}, 3, v{vT0}
        s_and_b32 s{sT0}, s{sWV}, 1
        s_lshl_b32 s{sT1}, s{sT0}, 6
        v_xor_b32 v{vWR}, s{sT1}, v{vT0}
        v_add_u32 v{vWR}, {(1+2*sp)*8192}, v{vWR}
        v_add_u32 v{vWR+1}, {2*SLOT}, v{vWR}
        s_lshl_b32 s{sT2}, s{sFB}, 1
        s_add_u32 s{sT2}, s{sT2}, s{sT0}
        s_lshl_b32 s{sT2}, s{sT2}, 7
        s_lshl_b32 s{sT1}, s{sTB}, 1
        s_add_u32 s{sDEF}, s{sT2}, s{sT1}
        ''')
        if sp == 0:
            a(f'''
            s_lshl_b32 s{sT0}, s{sT0}, 11
            s_add_u32 s{sT0}, s{sT0}, 131072
            v_add_u32 v{vST}, s{sT0}, v{vL16}
            s_lshl_b32 s{sDEF}, s{sDEF}, 10
            ''')
        else:
            a(f'v_and_b32 v{vT3}, 31, v{vLANE}')
            swap23(a, f'v{vST}', f'v{vT3}', f'v{vT1}')
            a(f'''
            v_and_b32 v{vT0}, 32, v{vLANE}
            v_add_u32 v{vST}, v{vST}, v{vT0}
            v_lshlrev_b32 v{vST}, 4, v{vST}
            v_and_b32 v{vT0}, 15, v{vLANE}
            v_lshrrev_b32 v{vT1}, 5, v{vLANE}
            v_lshl_add_u32 v{vT1}, v{vT1}, 4, v{vT0}
            v_lshlrev_b32 v{vT1}, 4, v{vT1}
            v_bfe_u32 v{vT0}, v{vLANE}, 4, 1
            v_lshl_add_u32 v{vST+1}, v{vT0}, 17, v{vT1}
            s_lshl_b32 s{sDEF}, s{sDEF}, 11
            s_add_u32 s{sDEF}, s{sDEF}, {WS_KV}
            ''')
        a('s_barrier')
        a('s_waitcnt lgkmcnt(0)')
        a(f's_add_u32 s{sTAG}, s{sTAG}, 1')
        stamp(a, 'b0pre')
        a('s_barrier')
        stamp(a, 'b0')
        for x in reads(0, 0, sp): a(x)
        for c in range(8):
            for ks in range(3):
                rd = reads(c, ks+1, sp)
                for x in rd[:2]: a(x)
                a('s_waitcnt lgkmcnt(2)')
                for x in interleave(mfmas(c, ks, sp), rd[2:]): a(x)
            a('s_waitcnt lgkmcnt(0)')
            stamp(a, f'a{c+1}')
            a('s_barrier')
            stamp(a, f'b{c+1}')
            m = mfmas(c, 3, sp)
            if c < 7:
                for x in interleave(m, reads(c+1, 0, sp)): a(x)
            else:
                for x in m: a(x)
        stamp(a, 'gend')
        if sp == 0:
            a.nop(9)
            for j in range(2):
                d = vACC + 32*j
                cvt(d, True)
                a(f'ds_write_b128 v{vST}, {vr(d,4)} offset:{j*4096}')
                a(f'ds_write_b128 v{vST}, {vr(d+4,4)} offset:{j*4096+1024}')
            a('s_waitcnt lgkmcnt(0)')
        a('s_barrier')
        stamp(a, 'b9')
        a(f'''
        s_add_u32 s{SKV}, s{pWS}, {WS_KV + 32*131072}
        s_addc_u32 s{SKV+1}, s{pWS+1}, 0
        s_mov_b32 s{SKV+2}, 131072
        s_mov_b32 s{SKV+3}, 0x00020000
        ''')
    def deferred_stores():
        a(f'''
        s_cmp_ge_u32 s{sWV}, 4
        s_cbranch_scc1 L_back{OPT.dhook}
        s_cmp_ge_u32 s{sWV}, 2
        s_cbranch_scc1 L_def1
        s_add_u32 s{sT3}, s{sDEF}, 65536
        ''')
        for j in range(2):
            d = vACC + 32*j + 16
            cvt(d, True)
            a(f'buffer_store_dwordx4 {vr(d,4)}, v{vL16}, {S4(SWS)}, s{sDEF} offen offset:{j*1024} sc1')
            a(f'buffer_store_dwordx4 {vr(d+4,4)}, v{vL16}, {S4(SWS)}, s{sT3} offen offset:{j*1024} sc1')
        a(f's_branch L_back{OPT.dhook}')
        a('L_def1:')
        a(f's_add_u32 s{sT3}, s{sDEF}, 131072')
        for j in range(2):
            d = vACC + 32*j
            cvt(d, False)
            a(f'buffer_store_dwordx4 {vr(d,4)}, v{vST}, {S4(SWS)}, s{sDEF} offen offset:{j*2048} sc1')
            a(f'buffer_store_dwordx4 {vr(d+4,4)}, v{vST}, {S4(SWS)}, s{sT3} offen offset:{j*2048} sc1')
            d += 16
            cvt(d, False)
            a(f'buffer_store_dwordx4 {vr(d,4)}, v{vST+1}, {S4(SWS)}, s{sDEF} offen offset:{j*2048+1024} sc1')
            a(f'buffer_store_dwordx4 {vr(d+4,4)}, v{vST+1}, {S4(SWS)}, s{sDEF} offen offset:{j*2048+1536} sc1')
        a(f's_branch L_back{OPT.dhook}')
    gemm(1)
    a('s_branch L_p_end')
    gemm(0)
    a('L_p_end:')
    stamp(a, 'pend')
    a(f'''
    s_lshl_b32 s{sT0}, s{sKH}, 16
    v_add_u32 v{vKA}, s{sT0}, v{vL16}
    v_and_b32 v{vT0}, 15, v{vLANE}
    v_lshrrev_b32 v{vT2}, 5, v{vLANE}
    v_lshl_add_u32 v{vT0}, v{vT2}, 4, v{vT0}
    v_lshlrev_b32 v{vT0}, 4, v{vT0}
    v_add_u32 v{vVA}, s{sT0}, v{vT0}
    v_mov_b32 v{vIDX}, 0xdddddddd
    v_and_b32 v{vT0}, 27, v{vLANE}
    v_cmp_eq_u32 vcc, 16, v{vT0}
    v_mov_b32 v{vT2}, 0x3f803f80
    s_lshl_b32 s{sT0}, s{sU}, 11
    s_add_u32 s{sT0}, s{sT0}, 131072
    v_cndmask_b32 v{vT2}, 0, v{vT2}, vcc
    v_add_u32 v{vT1}, s{sT0}, v{vL16}
    s_mov_b32 s{sPASS}, 0
    ''')
    for s in range(2):
        for i in range(8):
            a(f'v_accvgpr_write_b32 a{KV(s)+4+i}, v{vT2}')
    a(f'ds_read_b128 {ar(Q(0),4)}, v{vT1}')
    a(f'ds_read_b128 {ar(Q(1),4)}, v{vT1} offset:1024')
    a('L_pass:')
    a(f'''
    ds_read_b128 {ar(KV(0),4)}, v{vKA}
    s_mov_b64 exec, s[{sMASK}:{sMASK+1}]
    ds_read_b128 {ar(KV(0)+4,4)}, v{vVA} offset:1024
    ds_read_b128 {ar(KV(0)+8,4)}, v{vVA} offset:1536
    s_mov_b64 exec, -1
    s_waitcnt lgkmcnt(2)
    ''')
    for q in range(2):
        a(f'v_mfma_f32_32x32x16_bf16 {vr(negm(q),16)}, {ar(KV(0),4)}, {ar(Q(q),4)}, 0')
    for q in range(2):
        for i in range(8):
            a(f'v_pk_mov_b32 {vr(O(q)+2*i,2)}, 0, 0')
    for q in range(2):
        maxtree(a, f'v{vMX+q}', negm(q))
    setm(a, hex(f2u(-OPT.delta)))
    a('s_waitcnt lgkmcnt(0)')
    a(f'v_mfma_f32_32x32x16_bf16 {vr(S(0),16)}, {ar(KV(0),4)}, {ar(Q(0),4)}, {vr(negm(0),16)}')
    a.nop(12)
    stamp(a, 'loop0', 0); stamp(a, 'loop1', 1)
    a('.p2align 6')
    a('L_loop:')
    steps = [(t, q) for t in range(32) for q in range(2)]
    n = len(steps)
    HOOKS = {OPT.dhook: ('L_hookd', None), 7: ('L_hook0', 'L_hook3'), 13: ('L_hook1', None), 15: ('L_hook2', 'L_hook4'), 17: (None, 'L_hook5')}
    for i, (t, q) in enumerate(steps):
        b = i % 2
        tp, qp = steps[max(i-1, 0)] if i else (1, 1)
        e = [f'v_exp_f32 v{S(b)+j}, v{S(b)+j}' for j in range(16)]
        smf2 = f'v_smfmac_f32_32x32x32_bf16 {vr(O(qp),16)}, {ar(KV(tp%2)+8,4)}, {vr(S(b^1)+8,8)}, v{vIDX}'
        smf1 = f'v_smfmac_f32_32x32x32_bf16 {vr(O(q),16)}, {ar(KV(t%2)+4,4)}, {vr(S(b),8)}, v{vIDX}'
        for x in e[0:2]: a(x)
        if i: a(smf2)
        if q == 0 and t < 31:
            s_ = (t+1) % 2
            off = (t+1)*2048
            if t in HOOKS:
                hb, ha = HOOKS[t]
                if hb and ha:
                    a(f's_cmp_eq_u32 s{sPASS}, 0')
                    a(f's_cbranch_scc1 {hb}')
                    a(f's_branch {ha}')
                else:
                    a(f's_cmp_eq_u32 s{sPASS}, {0 if hb else 1}')
                    a(f's_cbranch_scc1 {hb or ha}')
                a(f'L_back{t}:')
            if OPT.prof == 'loop' and t in (4, 8, 12, 16, 20, 26): stamp(a, f'it{t//2}', 0)
            a(f'ds_read_b128 {ar(KV(s_),4)}, v{vKA} offset:{off}')
            a(f's_mov_b64 exec, s[{sMASK}:{sMASK+1}]')
            a(f'ds_read_b128 {ar(KV(s_)+4,4)}, v{vVA} offset:{off+1024}')
            a(f'ds_read_b128 {ar(KV(s_)+8,4)}, v{vVA} offset:{off+1536}')
            a('s_mov_b64 exec, -1')
        for x in e[2:5]: a(x)
        if i < n-1:
            tn, qn = steps[i+1]
            if q == 1: a('s_waitcnt lgkmcnt(0)')
            a(f'v_mfma_f32_32x32x16_bf16 {vr(S(b^1),16)}, {ar(KV(tn%2),4)}, {ar(Q(qn),4)}, {vr(negm(qn),16)}')
        for x in e[5:10]: a(x)
        a(smf1)
        for x in e[10:16]: a(x)
    a(f'''
    s_mov_b32 s{sT0}, {hex(f2u(2.0**100))}
    s_nop 0
    v_smfmac_f32_32x32x32_bf16 {vr(O(1),16)}, {ar(KV(1)+8,4)}, {vr(S(1)+8,8)}, v{vIDX}
    ''')
    stamp(a, 'endB', 0); stamp(a, 'endA', 1)
    a(f'v_fma_f32 v{vMX}, v{O(0)}, 0, v{O(0)+8}')
    for i in range(1, 8):
        a(f'v_fma_f32 v{vMX}, v{O(0)+i}, 0, v{vMX}')
    a.nop(4)
    a(f'v_fma_f32 v{vMX+1}, v{O(1)}, 0, v{O(1)+8}')
    for i in range(1, 8):
        a(f'v_fma_f32 v{vMX+1}, v{O(1)+i}, 0, v{vMX+1}')
    a(f'''
    v_cmp_nle_f32 vcc, v{vMX}, s{sT0}
    v_cmp_nle_f32 s[{sCC}:{sCC+1}], v{vMX+1}, s{sT0}
    s_or_b64 vcc, vcc, s[{sCC}:{sCC+1}]
    s_cbranch_vccnz L_fallback
    L_fin:
    s_waitcnt vmcnt(0) lgkmcnt(0)
    ''')
    stamp(a, 'chkB', 0)
    a('s_barrier')
    stamp(a, 'e1B', 0); stamp(a, 'e1A', 1)
    a(f'''
    s_mul_i32 s{sT1}, s{sU}, 2560
    s_lshl_b32 s{sT0}, s{sKH}, 16
    s_add_u32 s{sT0}, s{sT0}, s{sT1}
    s_mul_i32 s{sT2}, s{sPASS}, {96*1024}
    s_mul_i32 s{sT3}, s{sWV}, 2560
    s_add_u32 s{sT3}, s{sT3}, s{sT2}
    s_cmp_eq_u32 s{sPASS}, 0
    s_cselect_b32 s{sT0}, s{sT0}, s{sT3}
    v_add_u32 v{vKA}, s{sT0}, v{vL16}
    v_lshrrev_b32 v{vT3}, 1, v{vL16}
    v_add_u32 v{vVA}, s{sT0}, v{vT3}
    s_cmp_eq_u32 s{sKH}, 0
    s_cbranch_scc1 L_send1
    v_mov_b32 v{O(0)+9}, v{negm(0)}
    ds_write_b128 v{vKA}, {vr(O(0),4)}
    ds_write_b128 v{vKA}, {vr(O(0)+4,4)} offset:1024
    ds_write_b64 v{vVA}, {vr(O(0)+8,2)} offset:2048
    ''')
    for i in range(0, 10, 2):
        a(f'v_pk_mov_b32 {vr(O(0)+i,2)}, {vr(O(1)+i,2)}, {vr(O(1)+i,2)} op_sel:[0,1]')
    a(f'''
    v_mov_b32 v{negm(0)}, v{negm(1)}
    s_branch L_sent
    L_send1:
    v_mov_b32 v{O(1)+9}, v{negm(1)}
    ds_write_b128 v{vKA}, {vr(O(1),4)}
    ds_write_b128 v{vKA}, {vr(O(1)+4,4)} offset:1024
    ds_write_b64 v{vVA}, {vr(O(1)+8,2)} offset:2048
    L_sent:
    s_xor_b32 s{sT1}, s{sT0}, 65536
    s_xor_b32 s{sT3}, s{sWV}, 4
    s_mul_i32 s{sT3}, s{sT3}, 2560
    s_add_u32 s{sT3}, s{sT3}, s{sT2}
    s_cmp_eq_u32 s{sPASS}, 0
    s_cselect_b32 s{sT0}, s{sT1}, s{sT3}
    v_add_u32 v{vKA}, s{sT0}, v{vL16}
    v_add_u32 v{vVA}, s{sT0}, v{vT3}
    s_cmp_eq_u32 s{sPASS}, 0
    s_cbranch_scc0 L_fin_a
    ''')
    a(f'''
    s_lshl_b32 s{sOOFF}, s{sTB}, 1
    s_lshr_b32 s{sT0}, s{sU}, 1
    s_add_u32 s{sOOFF}, s{sOOFF}, s{sT0}
    s_lshl_b32 s{sOOFF}, s{sOOFF}, 6
    s_lshl_b32 s{sT0}, s{sFB}, 1
    s_and_b32 s{sT1}, s{sU}, 1
    s_add_u32 s{sT0}, s{sT0}, s{sT1}
    s_lshl_b32 s{sT0}, s{sT0}, 1
    s_add_u32 s{sT0}, s{sT0}, s{sKH}
    s_add_u32 s{sT0}, s{sT0}, 32
    s_branch L_fin_c
    L_fin_a:
    s_lshr_b32 s{sOOFF}, s{sTB}, 2
    s_lshl_b32 s{sOOFF}, s{sOOFF}, 2
    s_add_u32 s{sOOFF}, s{sOOFF}, s{sU}
    s_lshl_b32 s{sOOFF}, s{sOOFF}, 1
    s_add_u32 s{sOOFF}, s{sOOFF}, s{sKH}
    s_lshl_b32 s{sOOFF}, s{sOOFF}, 6
    s_lshl_b32 s{sT0}, s{sFB}, 2
    s_and_b32 s{sT1}, s{sTB}, 3
    s_add_u32 s{sT0}, s{sT0}, s{sT1}
    L_fin_c:
    s_add_u32 s{sOOFF}, s{sOOFF}, s{sT0}
    s_lshl_b32 s{sOOFF}, s{sOOFF}, 10
    s_add_u32 s{sOOFF}, s{sOOFF}, {WS_O}
    s_waitcnt lgkmcnt(0)
    ''')
    stamp(a, 'e2preB', 0)
    a('s_barrier')
    stamp(a, 'e2B', 0); stamp(a, 'e2A', 1)
    p = S(0); o = O(0)
    a(f'''
    ds_read_b64 {vr(p+8,2)}, v{vVA} offset:2048
    ds_read_b128 {vr(p,4)}, v{vKA}
    ds_read_b128 {vr(p+4,4)}, v{vKA} offset:1024
    s_waitcnt lgkmcnt(2)
    v_min_f32 v{vT0}, v{negm(0)}, v{p+9}
    v_sub_f32 v{vT2}, v{vT0}, v{negm(0)}
    v_sub_f32 v{vT3}, v{vT0}, v{p+9}
    v_max_f32 v{vT2}, 0xc3960000, v{vT2}
    v_max_f32 v{vT3}, 0xc3960000, v{vT3}
    v_cvt_i32_f32 v{vT2}, v{vT2}
    v_cvt_i32_f32 v{vT3}, v{vT3}
    v_ldexp_f32 v{o+8}, v{o+8}, v{vT2}
    v_ldexp_f32 v{p+8}, v{p+8}, v{vT3}
    v_add_f32 v{vT0}, v{o+8}, v{p+8}
    v_rcp_f32 v{vT0}, v{vT0}
    s_nop 0
    v_ldexp_f32 v{vT2}, v{vT0}, v{vT2}
    v_ldexp_f32 v{vT3}, v{vT0}, v{vT3}
    ''')
    for k in range(8):
        a(f'v_mul_f32 v{o+k}, v{o+k}, v{vT2}')
    a('s_waitcnt lgkmcnt(0)')
    for k in range(8):
        a(f'v_fma_f32 v{o+k}, v{p+k}, v{vT3}, v{o+k}')
    for k in range(4):
        a(f'v_cvt_pk_bf16_f32 v{o+k}, v{o+2*k}, v{o+2*k+1}')
    a(f'''
    buffer_store_dwordx4 {vr(o,4)}, v{vL16}, {S4(SWS)}, s{sOOFF} offen sc1
    s_cmp_eq_u32 s{sPASS}, 0
    s_cbranch_scc0 L_tail
    ''')
    a(f'''
    s_cmp_eq_u32 s{sKH}, 0
    s_cbranch_scc1 L_noam
    s_mul_i32 s{sT0}, s{sU}, {12*1024}
    s_add_u32 s{sT0}, s{sT0}, 16384
    ''')
    dma_linear(a, sT0, 12, SKV, vL16)
    a(f'''
    s_mul_i32 s{sT0}, s{sU}, {12*1024}
    s_add_u32 s{sT0}, s{sT0}, {65536+16384}
    ''')
    dma_linear(a, sT0, 12, SKV, vL16)
    a('L_noam:')
    for i in range(8):
        a(f'v_accvgpr_mov_b32 a{Q(0)+i}, a{QN(0)+i}')
    a(f'''
    s_lshl_b32 s{sT0}, s{sKH}, 14
    s_add_u32 s{sT0}, s{sT0}, 131072
    v_add_u32 v{vKA}, s{sT0}, v{vL16}
    v_and_b32 v{vT0}, 15, v{vLANE}
    v_lshrrev_b32 v{vT2}, 5, v{vLANE}
    v_lshl_add_u32 v{vT0}, v{vT2}, 4, v{vT0}
    v_lshlrev_b32 v{vT0}, 4, v{vT0}
    v_add_u32 v{vVA}, s{sT0}, v{vT0}
    s_mov_b32 s{sPASS}, 1
    ''')
    stamp(a, 'startA')
    a('s_branch L_pass')
    a('L_hookd:')
    deferred_stores()
    a('L_hook0:')
    a(f'''
    s_waitcnt vmcnt(0)
    s_barrier
    s_cmp_lg_u32 s{sWV}, 0
    s_cbranch_scc1 L_back7
    s_lshl_b32 s{sT0}, s{sFB}, 9
    s_lshr_b32 s{sT1}, s{sTB}, 2
    s_lshl_b32 s{sT1}, s{sT1}, 6
    s_add_u32 s{sT0}, s{sT0}, s{sT1}
    s_and_b32 s{sT1}, s{sTB}, 3
    s_lshl_b32 s{sT1}, s{sT1}, 2
    s_add_u32 s{sT0}, s{sT0}, s{sT1}
    s_add_u32 s{sT0}, s{sT0}, {F2}
    ''')
    signal(a, sT0)
    a('s_branch L_back7')
    a('L_hook1:')
    a(f's_lshl_b32 s{sT0}, s{sFB}, 9')
    a(f's_add_u32 s{sT0}, s{sT0}, {F2}')
    poll_issue(a, 32, sT0)
    a(f'''
    s_branch L_back13
    L_hook2:
    s_lshl_b32 s{sT0}, s{sFB}, 9
    s_add_u32 s{sT0}, s{sT0}, {F2}
    ''')
    poll_check(a, 32, sT0)
    a(f'''
    s_lshl_b32 s{sT0}, s{sFB}, 2
    s_and_b32 s{sT1}, s{sTB}, 3
    s_add_u32 s{sT0}, s{sT0}, s{sT1}
    s_lshl_b32 s{sT1}, s{sT0}, 17
    s_add_u32 s{sT1}, s{sT1}, {WS_KV}
    s_add_u32 s{SKV}, s{pWS}, s{sT1}
    s_addc_u32 s{SKV+1}, s{pWS+1}, 0
    s_mov_b32 s{SKV+2}, 131072
    s_mov_b32 s{SKV+3}, 0x00020000
    s_lshl_b32 s{sT0}, s{sT0}, 6
    s_lshr_b32 s{sT1}, s{sTB}, 2
    s_lshl_b32 s{sT1}, s{sT1}, 3
    s_add_u32 s{sT0}, s{sT0}, s{sT1}
    s_lshl_b32 s{sT1}, s{sU}, 1
    s_add_u32 s{sT0}, s{sT0}, s{sT1}
    s_lshl_b32 s{sT0}, s{sT0}, 10
    buffer_load_dwordx4 {ar(QN(0),4)}, v{vL16}, {S4(SWS)}, s{sT0} offen sc1
    buffer_load_dwordx4 {ar(QN(1),4)}, v{vL16}, {S4(SWS)}, s{sT0} offen offset:1024 sc1
    s_lshl_b32 s{sT0}, s{sKH}, 16
    s_lshl_b32 s{sT2}, s{sU}, 12
    s_add_u32 s{sT0}, s{sT0}, s{sT2}
    s_lshl_b32 s{sT1}, s{sWV}, 12
    s_add_u32 s{sT1}, s{sT1}, 131072
    ''')
    dma_moved(a, sT0, sT1, 4, SKV, vL16)
    a('s_branch L_back15')
    def wo_base(dst, which):
        tab = (0, 64, 128, 144) if which == 'B' else (16, 32, 48, 80)
        a(f's_lshr_b32 s{sT5}, s{sWV}, 1')
        a(f's_mul_i32 s{sT5}, s{sT5}, 8')
        a(f's_lshr_b32 s{dst}, {hex(sum(v << (8*i) for i, v in enumerate(tab)))}, s{sT5}')
        a(f's_and_b32 s{dst}, s{dst}, 0xff')
        a(f's_lshl_b32 s{dst}, s{dst}, 10')
    def wo_dma(srdreg, which):
        a(f'''
        v_lshrrev_b32 v{vT0}, 2, v{vLANE}
        v_lshrrev_b32 v{vT1}, 4, v{vLANE}
        v_xor_b32 v{vT0}, v{vT0}, v{vT1}
        v_and_b32 v{vT0}, 1, v{vT0}
        v_lshlrev_b32 v{vT0}, 6, v{vT0}
        v_and_b32 v{vT1}, 3, v{vLANE}
        v_lshl_add_u32 v{vT0}, v{vT1}, 4, v{vT0}
        v_lshrrev_b32 v{vT1}, 3, v{vLANE}
        v_lshl_add_u32 v{vT0}, v{vT1}, 10, v{vT0}
        v_add_u32 v{vT1}, 7168, v{vT0}
        v_add_u32 v{vT2}, {2*7168}, v{vT0}
        v_add_u32 v{vT3}, {3*7168}, v{vT0}
        s_lshl_b32 s{sT0}, s{sWV}, 16
        s_lshl_b32 s{sT1}, s{sNB}, 7
        s_add_u32 s{sT0}, s{sT0}, s{sT1}
        ''')
        wo_base(sT1, which)
        a(f's_and_b32 s{sT5}, s{sWV}, 1')
        a(f's_lshl_b32 s{sT5}, s{sT5}, 13')
        a(f's_add_u32 s{sT1}, s{sT1}, s{sT5}')
        for g in range(2):
            if g:
                a(f's_add_u32 s{sT0}, s{sT0}, 32768')
                a(f's_add_u32 s{sT1}, s{sT1}, 4096')
            a(f's_mov_b32 m0, s{sT1}')
            a('s_nop 0')
            for i in range(4):
                a(f'buffer_load_dwordx4 v{vT0+i}, {S4(srdreg)}, s{sT0} offen offset:{i*1024}{" nt" if OPT.nto else ""} lds')
    def switch_addr():
        a(f'''
        s_lshl_b32 s{sT0}, s{sKH}, 16
        v_add_u32 v{vKA}, s{sT0}, v{vL16}
        v_and_b32 v{vT0}, 15, v{vLANE}
        v_lshrrev_b32 v{vT2}, 5, v{vLANE}
        v_lshl_add_u32 v{vT0}, v{vT2}, 4, v{vT0}
        v_lshlrev_b32 v{vT0}, 4, v{vT0}
        v_add_u32 v{vVA}, s{sT0}, v{vT0}
        ''')
    a('L_hook3:')
    switch_addr()
    a(f'''
    s_waitcnt vmcnt(0)
    s_barrier
    ''')
    stamp(a, 'h3')
    srd(a, SWB, pWOB, 512*1024)
    srd(a, SWA, pWOA, 512*1024)
    srd(a, SOUT, pOUT, 2097152)
    wo_dma(SWB, 'B')
    a(f'''
    s_cmp_lg_u32 s{sWV}, 0
    s_cbranch_scc1 L_back7
    s_lshl_b32 s{sT0}, s{sTB}, 7
    s_lshr_b32 s{sT1}, s{sFB}, 2
    s_lshl_b32 s{sT1}, s{sT1}, 6
    s_add_u32 s{sT0}, s{sT0}, s{sT1}
    s_and_b32 s{sT1}, s{sFB}, 3
    s_lshl_b32 s{sT1}, s{sT1}, 2
    s_add_u32 s{sT0}, s{sT0}, s{sT1}
    s_add_u32 s{sT0}, s{sT0}, {F3}
    ''')
    signal(a, sT0)
    a('s_branch L_back7')
    a('L_hook4:')
    a(f's_lshl_b32 s{sT0}, s{sTB3}, 7')
    a(f's_add_u32 s{sT0}, s{sT0}, {F3}')
    poll_issue(a, 8, sT0)
    a(f'''
    s_branch L_back15
    L_hook5:
    s_lshl_b32 s{sT0}, s{sTB3}, 7
    s_add_u32 s{sT0}, s{sT0}, {F3}
    ''')
    poll_check(a, 8, sT0)
    def o_loads(dst, hbase):
        a(f'''
        s_and_b32 s{sT1}, s{sWV}, 1
        s_lshl_b32 s{sT0}, s{sTB3}, 1
        s_add_u32 s{sT0}, s{sT0}, s{sT1}
        s_lshl_b32 s{sT2}, s{sT0}, 16
        s_lshr_b32 s{sT1}, s{sWV}, 1
        s_lshl_b32 s{sT1}, s{sT1}, 13
        s_add_u32 s{sT2}, s{sT2}, s{sT1}
        s_add_u32 s{sT2}, s{sT2}, {WS_O + hbase*1024}
        ''')
        for i in range(8):
            if i == 4: a(f's_add_u32 s{sT2}, s{sT2}, 4096')
            a(f'buffer_load_dwordx4 {vr(dst+4*i,4)}, v{vL16}, {S4(SWS)}, s{sT2} offen offset:{(i%4)*1024} sc1')
    o_loads(vOFB, 32)
    a(f'''
    s_lshl_b32 s{sT0}, s{sT0}, 7
    s_add_u32 s{sT0}, s{sT0}, {WS_G}
    v_and_b32 v{vT0}, 31, v{vLANE}
    v_lshlrev_b32 v{vT0}, 2, v{vT0}
    buffer_load_dword v{vG}, v{vT0}, {S4(SWS)}, s{sT0} offen sc1
    s_branch L_back17
    ''')
    a('L_fallback:')
    a(f'''
    s_cmp_eq_u32 s{sPASS}, 0
    s_cselect_b32 s{sT0}, 32, 0
    s_lshl_b32 s{sT1}, s{sFB}, 2
    s_and_b32 s{sT2}, s{sTB}, 3
    s_add_u32 s{sT1}, s{sT1}, s{sT2}
    s_cmp_eq_u32 s{sPASS}, 0
    s_cselect_b32 s{sT0}, 32, s{sT1}
    s_lshl_b32 s{sT0}, s{sT0}, 1
    s_add_u32 s{sT0}, s{sT0}, s{sKH}
    s_lshl_b32 s{sT0}, s{sT0}, 16
    s_add_u32 s{sT0}, s{sT0}, {WS_KV}
    s_mov_b32 s{sT1}, s{sT0}
    s_mov_b32 s{sIT}, 0
    v_mov_b32 v{vMX}, 0xff800000
    v_mov_b32 v{vMX+1}, 0xff800000
    v_and_b32 v{vT0}, 15, v{vLANE}
    v_lshrrev_b32 v{vT2}, 5, v{vLANE}
    v_lshl_add_u32 v{vT0}, v{vT2}, 4, v{vT0}
    v_lshlrev_b32 v{vVA}, 4, v{vT0}
    s_waitcnt vmcnt(0) lgkmcnt(0)
    L_fb_max:
    buffer_load_dwordx4 {ar(KV(0),4)}, v{vL16}, {S4(SWS)}, s{sT1} offen sc1
    s_waitcnt vmcnt(0)
    ''')
    for q in range(2):
        a(f'v_mfma_f32_32x32x16_bf16 {vr(negm(q),16)}, {ar(KV(0),4)}, {ar(Q(q),4)}, 0')
    a.nop(13)
    for q in range(2):
        maxtree(a, f'v{vKA}', negm(q))
        a(f'v_max_f32 v{vMX+q}, v{vMX+q}, v{vKA}')
    a(f'''
    s_add_u32 s{sT1}, s{sT1}, 2048
    s_add_u32 s{sIT}, s{sIT}, 1
    s_cmp_lt_u32 s{sIT}, 32
    s_cbranch_scc1 L_fb_max
    ''')
    setm(a, '0')
    for q in range(2):
        for i in range(8):
            a(f'v_pk_mov_b32 {vr(O(q)+2*i,2)}, 0, 0')
    a(f'''
    s_mov_b32 s{sIT}, 0
    L_fb_sum:
    buffer_load_dwordx4 {ar(KV(0),4)}, v{vL16}, {S4(SWS)}, s{sT0} offen sc1
    s_mov_b64 exec, s[{sMASK}:{sMASK+1}]
    buffer_load_dwordx4 {ar(KV(0)+4,4)}, v{vVA}, {S4(SWS)}, s{sT0} offen offset:1024 sc1
    buffer_load_dwordx4 {ar(KV(0)+8,4)}, v{vVA}, {S4(SWS)}, s{sT0} offen offset:1536 sc1
    s_mov_b64 exec, -1
    s_waitcnt vmcnt(0)
    ''')
    for q in range(2):
        a(f'v_mfma_f32_32x32x16_bf16 {vr(S(q),16)}, {ar(KV(0),4)}, {ar(Q(q),4)}, {vr(negm(q),16)}')
    a.nop(13)
    for q in range(2):
        for j in range(16):
            a(f'v_exp_f32 v{S(q)+j}, v{S(q)+j}')
    a.nop(2)
    for q in range(2):
        a(f'v_smfmac_f32_32x32x32_bf16 {vr(O(q),16)}, {ar(KV(0)+4,4)}, {vr(S(q),8)}, v{vIDX}')
        a(f'v_smfmac_f32_32x32x32_bf16 {vr(O(q),16)}, {ar(KV(0)+8,4)}, {vr(S(q)+8,8)}, v{vIDX}')
    a(f'''
    s_add_u32 s{sT0}, s{sT0}, 2048
    s_add_u32 s{sIT}, s{sIT}, 1
    s_cmp_lt_u32 s{sIT}, 32
    s_cbranch_scc1 L_fb_sum
    ''')
    a.nop(14)
    a('s_branch L_fin')
    a('L_tail:')
    a(f'''
    s_lshl_b32 s{sT0}, s{sTB}, 7
    s_lshr_b32 s{sT1}, s{sFB}, 2
    s_lshl_b32 s{sT1}, s{sT1}, 6
    s_add_u32 s{sT0}, s{sT0}, s{sT1}
    s_and_b32 s{sT1}, s{sFB}, 3
    s_lshl_b32 s{sT1}, s{sT1}, 2
    s_add_u32 s{sT0}, s{sT0}, s{sT1}
    s_add_u32 s{sT0}, s{sT0}, {F4}
    s_waitcnt vmcnt(0)
    ''')
    stamp(a, 'e3pre')
    a(f'''
    s_barrier
    s_cmp_lg_u32 s{sWV}, 0
    s_cbranch_scc1 L_nosig4
    ''')
    signal(a, sT0)
    a('L_nosig4:')
    stamp(a, 'e3')
    wo_dma(SWA, 'A')
    vWR3 = vKA
    a(f'''
    v_bfe_u32 v{vT0}, v{vLANE}, 2, 2
    v_lshrrev_b32 v{vT1}, 5, v{vLANE}
    v_lshl_add_u32 v{vT1}, v{vT1}, 2, v{vT0}
    v_lshrrev_b32 v{vT0}, 1, v{vT0}
    v_lshlrev_b32 v{vT0}, 6, v{vT0}
    v_lshl_add_u32 v{vT0}, v{vT1}, 7, v{vT0}
    v_bfe_u32 v{vT1}, v{vLANE}, 4, 1
    v_lshl_add_u32 v{vT0}, v{vT1}, 5, v{vT0}
    v_and_b32 v{vT1}, 1, v{vLANE}
    v_lshl_add_u32 v{vT0}, v{vT1}, 4, v{vT0}
    v_bfe_u32 v{vT1}, v{vLANE}, 1, 1
    v_lshl_add_u32 v{vT0}, v{vT1}, 3, v{vT0}
    ''')
    wo_base(sT0, 'A')
    wo_base(sT1, 'B')
    a(f'''
    v_add_u32 v{vMX}, s{sT0}, v{vT0}
    v_xor_b32 v{vMX+1}, 64, v{vMX}
    v_add_u32 v{vMX+2}, s{sT1}, v{vT0}
    v_xor_b32 v{vMX+3}, 64, v{vMX+2}
    s_lshr_b32 s{sT3}, s{sTB3}, 2
    s_lshl_b32 s{sT3}, s{sT3}, 9
    s_add_u32 s{sT3}, s{sT3}, {F4}
    ''')
    def wreads(h, va):
        buf = h & 1
        return [f'ds_read_b64_tr_b16 {vr(vWF3+8*buf+4*u+2*j,2)}, v{va+u} offset:{h*2048+j*1024}' for u in range(2) for j in range(2)]
    def half(acc, frag, va, vm=False):
        for x in wreads(0, va): a(x)
        for h in range(8):
            buf = h & 1
            if h < 7:
                for x in wreads(h+1, va): a(x)
            a(f's_waitcnt lgkmcnt({4 if h < 7 else 0})' if not vm else f's_waitcnt vmcnt({7-h}) lgkmcnt({4 if h < 7 else 0})')
            for u in range(2):
                d = acc + 16*u
                a(f'v_mfma_f32_32x32x16_bf16 {vr(d,16)}, {vr(vWF3+8*buf+4*u,4)}, {vr(frag+4*h,4)}, {"0" if h == 0 else vr(d,16)}')
    half(vACB, vOFB, vMX+2)
    poll_issue(a, 32, sT3)
    a(f'v_sub_f32 v{vIDX}, 1.0, v{vG}')
    a.nop(6)
    for i in range(32):
        a(f'v_mul_f32 v{vACB+i}, v{vIDX}, v{vACB+i}')
    a('s_waitcnt vmcnt(1)')
    a('s_barrier')
    stamp(a, 'e4')
    poll_check(a, 32, sT3)
    stamp(a, 'f4')
    o_loads(vOFA, 0)
    half(vACA, vOFA, vMX, vm=True)
    a(f'''
    s_and_b32 s{sT0}, s{sWV}, 1
    s_lshr_b32 s{sT1}, s{sWV}, 1
    s_lshl_b32 s{sT2}, s{sT0}, 4
    s_add_u32 s{sT3}, s{sT2}, s{sT1}
    s_lshl_b32 s{sT3}, s{sT3}, 11
    v_add_u32 v{vKA}, s{sT3}, v{vL16}
    s_lshl_b32 s{sT3}, s{sT1}, 2
    s_add_u32 s{sT3}, s{sT3}, s{sT2}
    s_lshl_b32 s{sT3}, s{sT3}, 11
    v_add_u32 v{vVA}, s{sT3}, v{vL16}
    s_barrier
    ''')
    stamp(a, 'e5')
    a.nop(2)
    for d in range(4):
        for i in range(8):
            a(f'v_fma_f32 v{vACB+8*d+i}, v{vACA+8*d+i}, v{vG}, v{vACB+8*d+i}')
        a(f'ds_write_b128 v{vKA}, {vr(vACB+8*d,4)} offset:{d*8192}')
        a(f'ds_write_b128 v{vKA}, {vr(vACB+8*d+4,4)} offset:{d*8192+1024}')
    a(f'''
    v_and_b32 v{vT0}, 31, v{vLANE}
    v_lshrrev_b32 v{vT1}, 5, v{vLANE}
    v_lshlrev_b32 v{vT1}, 4, v{vT1}
    v_lshl_add_u32 v{vT0}, v{vT0}, 10, v{vT1}
    s_lshl_b32 s{sT2}, s{sTB3}, 1
    s_add_u32 s{sT2}, s{sT2}, s{sT0}
    s_lshl_b32 s{sT2}, s{sT2}, 15
    s_lshl_b32 s{sT3}, s{sNB}, 7
    s_add_u32 s{sT2}, s{sT2}, s{sT3}
    s_lshl_b32 s{sT3}, s{sT1}, 5
    s_add_u32 s{sT2}, s{sT2}, s{sT3}
    s_waitcnt lgkmcnt(0)
    s_barrier
    ''')
    for s in range(4):
        a(f'ds_read_b128 {vr(vOFA+8*s,4)}, v{vVA} offset:{s*2048}')
        a(f'ds_read_b128 {vr(vOFA+8*s+4,4)}, v{vVA} offset:{s*2048+1024}')
    a('s_waitcnt lgkmcnt(4)')
    for k in range(8):
        a(f'v_add_f32 v{vOFA+k}, v{vOFA+k}, v{vOFA+8+k}')
    a('s_waitcnt lgkmcnt(0)')
    for k in range(8):
        a(f'v_add_f32 v{vOFA+16+k}, v{vOFA+16+k}, v{vOFA+24+k}')
    for k in range(8):
        a(f'v_add_f32 v{vOFA+k}, v{vOFA+k}, v{vOFA+16+k}')
    for k in range(4):
        a(f'v_cvt_pk_bf16_f32 v{vOFA+k}, v{vOFA+2*k}, v{vOFA+2*k+1}')
    a(f'buffer_store_dwordx4 {vr(vOFA,4)}, v{vT0}, {S4(SOUT)}, s{sT2} offen')
    a(f'''
    s_or_b32 s{sT0}, s2, s{sWV}
    s_cmp_lg_u32 s{sT0}, 0
    s_cbranch_scc1 L_end
    s_mov_b32 s{sT0}, {WS_F}
    ''')
    signal(a, sT0)
    a('L_end:')
    if OPT.stamp:
        a('s_waitcnt vmcnt(0)')
        a('s_memrealtime s[4:5]')
        stamp(a, 'end')
        a(f'''
        s_waitcnt lgkmcnt(0)
        s_lshl_b32 s{sT0}, s2, 3
        s_add_u32 s{sT0}, s{sT0}, s{sWV}
        s_lshl_b32 s{sT0}, s{sT0}, 6
        s_add_u32 s{sT0}, s{sT0}, {WS_ST}
        v_mov_b32 v{vT0}, 0
        s_sub_u32 s4, s4, s100
        v_mov_b32 v{vT1}, s4
        buffer_store_dword v{vT1}, v{vT0}, {S4(SWS)}, s{sT0} offen offset:60
        v_mov_b32 v{vT1}, s100
        buffer_store_dword v{vT1}, v{vT0}, {S4(SWS)}, s{sT0} offen offset:56
        ''')
        for i in range(10):
            a(f'v_mov_b32 v{vT1}, s{STAMP0+2*i}')
            a(f'buffer_store_dword v{vT1}, v{vT0}, {S4(SWS)}, s{sT0} offen offset:{4*i}')
    a('L_done:')
    a('s_endpgm')
    hdr = f'''; gated mix of an MHA block and an MQA block, one persistent launch (256 workgroups, one per CU):
; @launch grid=(256,1,1) block=(512,1,1) lds={LDS_BYTES}
.amdgcn_target "amdgcn-amd-amdhsa--gfx950"
.text
'''
    return hdr + a.text() + kd(NAME, NV, NA, 102, OPT.denorm)

if __name__ == '__main__':
    fn = sys.argv[1] if len(sys.argv) > 1 else 'gated_mix__mha_block__grouped_kv_mqa__prompt.s'
    for arg in sys.argv[2:]:
        if arg == 'stamp': OPT.stamp = True
        elif '=' in arg:
            k, v = arg.split('=')
            setattr(OPT, k, type(getattr(OPT, k))(v))
    open(fn, 'w').write(gen())
```
